```python
import torch

def _softmax(x, axis=-1):
    return torch.softmax(x, dim=axis)
def _gelu(x):
    return torch.nn.functional.gelu(x, approximate="tanh")
def _silu(x):
    return torch.nn.functional.silu(x)
def _sigmoid(x):
    return torch.sigmoid(x)
def _layernorm(x, axis=-1, eps=1e-5):
    m = x.mean(dim=axis, keepdim=True)
    v = x.var(dim=axis, keepdim=True, unbiased=False)
    return (x - m) / torch.sqrt(v + eps)
def _scatter_add(tgt, idx, src, axis=0):
    return tgt.clone().index_add_(axis, idx, src)
def _segment_sum(src, seg, n):
    out = torch.zeros((n,) + src.shape[1:], dtype=src.dtype)
    return out.index_add_(0, seg, src)
def _pad(x, pw):
    flat = tuple(v for pair in reversed(pw) for v in pair)
    return torch.nn.functional.pad(x, flat)

kernel_name = 'recurrent_scan__mha_block_cached__swiglu_ffn__decode'

def setup_inputs():

    _w = (lambda a: (lambda t: t.to(torch.bfloat16) if t.is_floating_point() else t)(torch.as_tensor(a)))
    def _A_setup():
        B, Sq, D = 1, 1, 640
        H, Sk, Dh = 32, 4096, 192
        return {
            "x": _w((lambda *s: torch.randn(*s, dtype=torch.bfloat16) * 0.05)(B, Sq, D)),
            "k_cache": _w((lambda *s: torch.randn(*s, dtype=torch.bfloat16) * 1.6)(B, H, Sk, Dh)),
            "v_cache": _w((lambda *s: torch.randn(*s, dtype=torch.bfloat16) * 0.2)(B, H, Sk, Dh)),
            "wq": _w((lambda *s: torch.randn(*s, dtype=torch.bfloat16) * 1.6)(D, H * Dh) * (D ** -0.5)),
            "wo": _w((lambda *s: torch.randn(*s, dtype=torch.bfloat16) * 0.2)(H * Dh, D) * ((H * Dh) ** -0.5)),
        }
    _A_in = _A_setup()

    def _B_setup():
        B, S, D, F = 1, 1, 640, 1536
        return {
            "x": _w((lambda *s: torch.randn(*s, dtype=torch.bfloat16) * 0.05)(B, S, D)),
            "w_gate": _w((lambda *s: torch.randn(*s, dtype=torch.bfloat16) * 0.1)(D, F)),
            "w_up": _w((lambda *s: torch.randn(*s, dtype=torch.bfloat16) * 0.1)(D, F)),
            "w_down": _w((lambda *s: torch.randn(*s, dtype=torch.bfloat16) * 0.1)(F, D)),
        }
    _B_in = _B_setup()

    return {
        "A_x": _A_in["x"],
        "A_k_cache": _A_in["k_cache"],
        "A_v_cache": _A_in["v_cache"],
        "A_wq": _A_in["wq"],
        "A_wo": _A_in["wo"],
        "B_x": _B_in["x"],
        "B_w_gate": _B_in["w_gate"],
        "B_w_up": _B_in["w_up"],
        "B_w_down": _B_in["w_down"],
    }

def reference(A_x, A_k_cache, A_v_cache, A_wq, A_wo, B_x, B_w_gate, B_w_up, B_w_down):
    def _A_ref(x, k_cache, v_cache, wq, wo):
        B, Sq, D = x.shape
        H, Dh = 32, 192
        q = (lambda x, *d: x.permute(*d))((x @ wq).reshape(B, Sq, H, Dh), 0, 2, 1, 3)
        scores = torch.einsum("bhqd,bhkd->bhqk", q, k_cache) * (Dh ** -0.5)
        p = _softmax(scores, axis=-1)
        o = torch.einsum("bhqk,bhkd->bhqd", p, v_cache)
        return (lambda x, *d: x.permute(*d))(o, 0, 2, 1, 3).reshape(B, Sq, H * Dh) @ wo

    def _B_ref(x, w_gate, w_up, w_down):
        g = _silu(x @ w_gate)
        u = x @ w_up
        return (g * u) @ w_down

    x = A_x
    xn = _layernorm(x, axis=-1)
    s = _A_ref(xn, A_k_cache, A_v_cache, A_wq, A_wo)
    g = _silu(_B_ref(xn, B_w_gate, B_w_up, B_w_down))
    return x + s * g
```

```python
KNAME = "recurrent_scan__mha_block_cached__swiglu_ffn__decode_kernel"
HEADER = """; Kernarg layout for this problem (96 bytes, ptrs only, base s[0:1]):
"""
class Asm:
    def __init__(self):
        self.lines = []
        self.nlabel = 0
    def __call__(self, s):
        for l in s.strip("\n").split("\n"):
            self.lines.append("    " + l.strip())
    def label(self, name):
        self.lines.append(name + ":")
    def newlabel(self, p="L"):
        self.nlabel += 1
        return "%s_%d" % (p, self.nlabel)
    def comment(self, s):
        self.lines.append("    ; " + s)
    def text(self):
        return "\n".join(self.lines) + "\n"

def wrap(body, grid, block, lds, vgpr=256, sgpr=64, accum=None, name=KNAME):
    if accum is None:
        accum = min(256, (vgpr + 3) // 4 * 4)
    s = HEADER
    s += "; @launch grid=(%d,1,1) block=(%d,1,1) lds=%d\n" % (grid, block, lds)
    s += '.amdgcn_target "amdgcn-amd-amdhsa--gfx950"\n.text\n.globl %s\n.p2align 8\n.type %s,@function\n%s:\n' % (name, name, name)
    s += body
    s += "    s_endpgm\n"
    s += '.section .rodata,"a"\n.p2align 6\n.amdhsa_kernel %s\n' % name
    s += "  .amdhsa_next_free_vgpr %d\n  .amdhsa_next_free_sgpr %d\n  .amdhsa_accum_offset %d\n" % (vgpr, sgpr, accum)
    s += "  .amdhsa_group_segment_fixed_size 0\n  .amdhsa_kernarg_size 96\n  .amdhsa_user_sgpr_count 2\n  .amdhsa_user_sgpr_kernarg_segment_ptr 1\n  .amdhsa_system_sgpr_workgroup_id_x 1\n.end_amdhsa_kernel\n"
    return s
```

```python
import struct, sys
from asmlib import *

def f2u(x): return struct.unpack("<I", struct.pack("<f", x))[0]
SCALE = f2u(192 ** -0.5); LOG2E = f2u(1.4426950408889634); INV640 = f2u(1.0 / 640.0); EPS = f2u(1e-5)

WS_QP = 0x00000; QP_STRIDE = 768
WS_O = 0x80000
WS_OUT2 = 0xB0000; OUT2_STRIDE = 640
WS_EPOCH = 0xE0000
STAMP_OFF = 128 << 20
L_STG = 0
L_Q = 24576
L_F = 25088
L_S = 29184
L_CNT = 33280
L_ML = 33312
LDS_BYTES = 33408
sX, sK, sV, sWQ, sWO, sBX, sWG, sWU, sWD, sOUT, sDBG, sWS = 4, 6, 8, 10, 12, 14, 16, 18, 20, 22, 24, 26
sW = 3
sCG, sRB, sH, sJ = 28, 29, 30, 31
sT0, sT1, sT2, sT3 = 32, 33, 34, 35
sM0 = 36
sSPIN = 44
sMW, sLW, sMG, sLG = 45, 46, 47, 48
sO = 54; sOUT2 = 56
sE, sTAG4 = 58, 59
sWW = 49
sPB = 50
sSTR = 52
sCT, sRB5 = 53, 14
sSTAMP = 60
sSELA, sSELB, sSELC, sTAG = 92, 93, 94, 95
vL, vKO, vL8, vL7, vLDSW, vFF, vFAC = 1, 2, 3, 4, 5, 6, 7
vM = 8; vQF = 12; vSC = 24; vT = 32; vKD = 48; vVD = 144; vX = 240

DPP_ALL = " row_mask:0xf bank_mask:0xf"

class Gen:
    def __init__(self, D=3, stamps=False, nt="nt", mapping="lin", norm_p=False, opts=None):
        self.a = Asm(); self.D = D; self.stamps = stamps; self.nt = nt
        self.mapping = mapping; self.norm_p = norm_p; self.o = opts or {}
        self.ops = []
    def vm(self, text, role=None):
        self.a(text); self.ops.append(role); return len(self.ops) - 1
    def wait(self, h, role=None):
        n = sum(1 for r in self.ops[h + 1:] if r is None or (role is not None and r == role))
        assert n <= 63
        self.a("s_waitcnt vmcnt(%d)" % n)
    def stamp(self, k):
        if self.stamps: self.a("s_memrealtime s[%d:%d]" % (sSTAMP + 2 * k, sSTAMP + 2 * k + 1))
    def dstamp(self, k):
        if self.o.get("diag", 0): self.stamp(k)
    def tstamp(self, k):
        if not self.o.get("diag", 0): self.stamp(k)
    def lgkm0(self): self.a("s_waitcnt lgkmcnt(0)")
    def exec_set(self, lo, hi): self.a("s_mov_b32 exec_lo, 0x%08x\ns_mov_b32 exec_hi, 0x%08x" % (lo, hi))
    def exec_valid(self): self.exec_set(0x00ff00ff, 0xff00ff00)
    def exec_all(self): self.a("s_mov_b64 exec, -1")
    def allreduce_sgpr(self, v, op, sdst):
        a = self.a
        for m in ("quad_perm:[1,0,3,2]" + DPP_ALL, "quad_perm:[2,3,0,1]" + DPP_ALL, "row_half_mirror" + DPP_ALL, "row_mirror" + DPP_ALL,
                  "row_bcast:15 row_mask:0xa bank_mask:0xf", "row_bcast:31 row_mask:0xc bank_mask:0xf"):
            a("s_nop 1"); a("%s_dpp v%d, v%d, v%d %s" % (op, v, v, v, m))
        a("s_nop 1"); a("v_readlane_b32 s%d, v%d, 63" % (sdst, v)); a("s_nop 1")
    def slots_reduce_sgpr(self, v, op, sdst):
        a = self.a
        for m in ("row_ror:8" + DPP_ALL, "row_bcast:15 row_mask:0xa bank_mask:0xf", "row_bcast:31 row_mask:0xc bank_mask:0xf"):
            a("s_nop 1"); a("%s_dpp v%d, v%d, v%d %s" % (op, v, v, v, m))
        a("s_nop 1"); a("v_readlane_b32 s%d, v%d, 63" % (sdst, v)); a("s_nop 1")
    def reduce8(self, regs, op="v_add_f32"):
        a = self.a
        for m in ("quad_perm:[1,0,3,2]", "quad_perm:[2,3,0,1]", "row_half_mirror"):
            if len(regs) < 3: a("s_nop %d" % (2 - len(regs)))
            for r in regs: a("%s_dpp v%d, v%d, v%d %s%s" % (op, r, r, r, m, DPP_ALL))
    def round_bf16(self, dst, src):
        self.a("v_cvt_pk_bf16_f32 v%d, v%d, v%d" % (dst, src, src))
        self.a("v_and_b32 v%d, 0xffff0000, v%d" % (dst, dst))
    def build_A(self, d, src):
        a = self.a
        a("v_cvt_pk_bf16_f32 v%d, v%d, v%d" % (d + 3, src, src))
        for v in range(3): a("v_and_b32 v%d, v%d, v%d" % (d + v, d + 3, vM + v))
        a("v_and_b32 v%d, v%d, v%d" % (d + 3, d + 3, vM + 3))
    def silu(self, dst, src, t):
        a = self.a
        a("v_mul_f32 v%d, 0x%08x, v%d" % (t, LOG2E ^ 0x80000000, src))
        a("v_exp_f32 v%d, v%d" % (t, t)); a("s_nop 0")
        a("v_add_f32 v%d, 1.0, v%d" % (t, t))
        a("v_rcp_f32 v%d, v%d" % (t, t)); a("s_nop 0")
        a("v_mul_f32 v%d, v%d, v%d" % (dst, src, t))
    def pk_add(self, d, x, y):
        self.a("v_pk_add_f32 v[%d:%d], v[%d:%d], v[%d:%d]" % (d, d + 1, x, x + 1, y, y + 1))
    def tagit(self, regs):
        for r in regs: self.a("v_bfi_b32 v%d, v%d, s%d, v%d" % (r, vFF, sTAG, r))
    def untag(self, regs):
        for r in regs: self.a("v_and_b32 v%d, 0xffffff00, v%d" % (r, r))
    def gather_tags(self, dst, r):
        a = self.a
        a("v_perm_b32 v%d, v%d, v%d, s%d" % (dst, r + 1, r, sSELA))
        a("v_perm_b32 v%d, v%d, v%d, s%d" % (dst, r + 2, dst, sSELB))
        a("v_perm_b32 v%d, v%d, v%d, s%d" % (dst, r + 3, dst, sSELC))
    def check_tags(self, granules, t):
        a = self.a
        self.gather_tags(t, granules[0])
        if len(granules) == 1:
            a("v_cmp_ne_u32 vcc, s%d, v%d" % (sTAG4, t)); return
        a("v_xor_b32 v%d, s%d, v%d" % (t, sTAG4, t))
        for r in granules[1:]:
            self.gather_tags(t + 1, r)
            a("v_xor_b32 v%d, s%d, v%d" % (t + 1, sTAG4, t + 1))
            a("v_or_b32 v%d, v%d, v%d" % (t, t, t + 1))
        a("v_cmp_ne_u32 vcc, 0, v%d" % t)
    def poll_retry(self, name, check_fn, reload_fn, sleep=2):
        a = self.a
        ok = a.newlabel("Lok_" + name); re_ = a.newlabel("Lre_" + name)
        check_fn()
        a("s_cbranch_vccz %s" % ok)
        a.label(re_)
        a("s_add_u32 s%d, s%d, 1" % (sSPIN, sSPIN))
        a("s_cmp_gt_u32 s%d, 200000" % sSPIN)
        a("s_cbranch_scc1 %s" % ok)
        a("s_sleep %d" % sleep)
        reload_fn()
        a("s_waitcnt vmcnt(0)")
        check_fn()
        a("s_cbranch_vccnz %s" % re_)
        a.label(ok)
    def prologue(self):
        a = self.a
        a("s_load_dwordx16 s[4:19], s[0:1], 0")
        a("s_load_dwordx8 s[20:27], s[0:1], 64")
        self.stamp(0)
        a("s_cmp_ge_u32 s2, 256")
        a("s_cbranch_scc1 L_end")
        a("v_lshrrev_b32 v%d, 6, v0" % vT)
        a("v_and_b32 v%d, 63, v0" % vL)
        a("v_readfirstlane_b32 s%d, v%d" % (sW, vT))
        a("v_lshrrev_b32 v%d, 3, v%d" % (vL8, vL))
        a("v_and_b32 v%d, 7, v%d" % (vL7, vL))
        a("v_mul_u32_u24 v%d, 384, v%d" % (vKO, vL8))
        a("v_lshl_add_u32 v%d, v%d, 4, v%d" % (vKO, vL7, vKO))
        if self.mapping == "lin":
            a("s_mov_b32 s%d, s2" % sT3)
        else:
            a("s_and_b32 s%d, s2, 7" % sT0); a("s_lshr_b32 s%d, s2, 3" % sT1)
            a("s_and_b32 s%d, s%d, 3" % (sT2, sT1)); a("s_lshl_b32 s%d, s%d, 2" % (sT0, sT0))
            a("s_add_u32 s%d, s%d, s%d" % (sT0, sT0, sT2)); a("s_lshr_b32 s%d, s%d, 2" % (sT1, sT1))
            a("s_lshl_b32 s%d, s%d, 3" % (sT0, sT0)); a("s_add_u32 s%d, s%d, s%d" % (sT3, sT0, sT1))
        a("s_lshr_b32 s%d, s%d, 3" % (sH, sT3))
        a("s_and_b32 s%d, s%d, 7" % (sJ, sT3))
        a("s_lshl_b32 s%d, s%d, 3" % (sT0, sT3))
        a("s_add_u32 s%d, s%d, s%d" % (sT0, sT0, sW))
        a("s_mul_i32 s%d, s%d, 24576" % (sT0, sT0))
        a("s_mul_i32 s%d, s2, 205" % sCG)
        a("s_lshr_b32 s%d, s%d, 11" % (sCG, sCG))
        a("s_mul_i32 s%d, s%d, 10" % (sRB, sCG))
        a("s_sub_u32 s%d, s2, s%d" % (sRB, sRB))
        a("s_mov_b32 s%d, 0" % sSPIN)
        a("s_waitcnt lgkmcnt(0)")
        a("s_add_u32 s%d, s%d, s%d" % (sK, sK, sT0)); a("s_addc_u32 s%d, s%d, 0" % (sK + 1, sK + 1))
        a("s_add_u32 s%d, s%d, s%d" % (sV, sV, sT0)); a("s_addc_u32 s%d, s%d, 0" % (sV + 1, sV + 1))
    def kv_load(self, which, i):
        a = self.a
        base = sK if which == "K" else sV
        reg = (vKD if which == "K" else vVD) + 4 * i
        grp, t = divmod(i, 3)
        if grp > 0 and grp % 2 == 0 and t == 0:
            a("s_add_u32 s%d, s%d, 6144" % (base, base)); a("s_addc_u32 s%d, s%d, 0" % (base + 1, base + 1))
        off = (grp % 2) * 3072 + t * 128
        return self.vm("global_load_dwordx4 v[%d:%d], v%d, s[%d:%d] offset:%d %s" % (reg, reg + 3, vKO, base, base + 1, off, self.nt))
    def consts(self):
        a = self.a
        a("v_and_b32 v%d, 1, v%d" % (vT, vL))
        a("v_lshlrev_b32 v%d, 4, v%d" % (vT, vT))
        a("v_mov_b32 v%d, 0xffff" % (vT + 1))
        a("v_lshlrev_b32 v%d, v%d, v%d" % (vT + 1, vT, vT + 1))
        a("v_bfe_u32 v%d, v%d, 1, 2" % (vT + 2, vL))
        for v in range(4): a("v_cmp_eq_u32 s[%d:%d], %d, v%d" % (sM0 + 2 * v, sM0 + 2 * v + 1, v, vT + 2))
        a("s_nop 0")
        for v in range(4): a("v_cndmask_b32 v%d, 0, v%d, s[%d:%d]" % (vM + v, vT + 1, sM0 + 2 * v, sM0 + 2 * v + 1))
        a("v_bfe_u32 v%d, v%d, 4, 1" % (vT, vL))
        a("v_lshlrev_b32 v%d, 4, v%d" % (vT, vT))
        a("v_lshl_add_u32 v%d, v%d, 5, v%d" % (vLDSW, vL7, vT))
        a("v_mov_b32 v%d, 0xff" % vFF)
        a("s_mov_b32 s%d, 0x0c0c0400" % sSELA)
        a("s_mov_b32 s%d, 0x0c040100" % sSELB)
        a("s_mov_b32 s%d, 0x04020100" % sSELC)
        a("s_add_u32 s%d, s%d, 0x%x" % (sO, sWS, WS_O)); a("s_addc_u32 s%d, s%d, 0" % (sO + 1, sWS + 1))
        a("s_add_u32 s%d, s%d, 0x%x" % (sOUT2, sWS, WS_OUT2)); a("s_addc_u32 s%d, s%d, 0" % (sOUT2 + 1, sWS + 1))
    def epoch_load(self):
        self.a("s_load_dword s%d, s[%d:%d], 0x%x" % (sE, sWS, sWS + 1, WS_EPOCH))
    def epoch_finish(self):
        a = self.a
        a("s_add_u32 s%d, s%d, 1" % (sE, sE))
        a("s_and_b32 s%d, s%d, 0xff" % (sTAG, sE))
        a("s_mul_i32 s%d, s%d, 0x01010101" % (sTAG4, sTAG))
    def tile_addr(self, dst, stride, base, colshift=0, sw=None):
        a = self.a
        a("v_lshrrev_b32 v%d, 5, v%d" % (dst, vL))
        a("s_lshl_b32 s%d, s%d, 1" % (sT0, sW if sw is None else sw))
        a("v_add_u32 v%d, s%d, v%d" % (dst, sT0, dst))
        a("v_mul_u32_u24 v%d, %d, v%d" % (dst, stride, dst))
        if colshift: a("v_lshl_add_u32 v%d, v%d, %d, v%d" % (dst, vLDSW, colshift, dst))
        else: a("v_add_u32 v%d, v%d, v%d" % (dst, dst, vLDSW))
        if base: a("v_add_u32 v%d, %d, v%d" % (dst, base, dst))
    def code_prefetch(self, dst):
        a = self.a
        a("s_getpc_b64 s[%d:%d]" % (sT0, sT1))
        lab = a.newlabel("Lpc"); a.label(lab)
        a("s_sub_u32 s%d, s%d, %s-%s" % (sT0, sT0, lab, KNAME))
        a("s_subb_u32 s%d, s%d, 0" % (sT1, sT1))
        a("s_lshr_b32 s%d, s2, 3" % sT2); a("s_and_b32 s%d, s%d, 7" % (sT2, sT2))
        a("s_lshl_b32 s%d, s%d, 2" % (sT2, sT2)); a("s_add_u32 s%d, s%d, s%d" % (sT2, sT2, sW))
        a("s_lshl_b32 s%d, s%d, 10" % (sT2, sT2))
        a("v_lshl_add_u32 v%d, v%d, 4, s%d" % (vT, vL, sT2))
        a("v_min_u32 v%d, L_codeend-%s-16, v%d" % (vT, KNAME, vT))
        return self.vm("global_load_dwordx4 v[%d:%d], v%d, s[%d:%d]" % (dst, dst + 3, vT, sT0, sT1))
    def layernorm(self, hx, own):
        a = self.a; t = vT
        self.wait(hx)
        u = vX + 6
        for k in range(5):
            a("v_lshlrev_b32 v%d, 16, v%d" % (u + 2 * k, vX + k))
            a("v_and_b32 v%d, 0xffff0000, v%d" % (u + 2 * k + 1, vX + k))
        a("v_add_f32 v%d, v%d, v%d" % (t, u, u + 1))
        for k in range(2, 10): a("v_add_f32 v%d, v%d, v%d" % (t, t, u + k))
        self.allreduce_sgpr(t, "v_add_f32", sT0)
        a("v_mov_b32 v%d, 0x%08x" % (t + 1, INV640))
        a("v_mul_f32 v%d, s%d, v%d" % (t + 2, sT0, t + 1))
        a("v_sub_f32 v%d, v%d, v%d" % (u, u, t + 2))
        a("v_mul_f32 v%d, v%d, v%d" % (t, u, u))
        for k in range(1, 10):
            a("v_sub_f32 v%d, v%d, v%d" % (u + k, u + k, t + 2))
            a("v_fmac_f32 v%d, v%d, v%d" % (t, u + k, u + k))
        self.allreduce_sgpr(t, "v_add_f32", sT0)
        a("v_mul_f32 v%d, s%d, v%d" % (t + 3, sT0, t + 1))
        self.round_bf16(t + 2, t + 2)
        self.round_bf16(t + 3, t + 3)
        a("v_add_f32 v%d, 0x%08x, v%d" % (t + 3, EPS, t + 3))
        self.round_bf16(t + 3, t + 3)
        a("v_sqrt_f32 v%d, v%d" % (t + 3, t + 3)); a("s_nop 0")
        self.round_bf16(t + 3, t + 3)
        a("v_rcp_f32 v%d, v%d" % (t + 5, t + 3))
        for src, dst in own:
            a("v_lshlrev_b32 v%d, 16, v%d" % (t + 4, src))
            a("v_sub_f32 v%d, v%d, v%d" % (t + 4, t + 4, t + 2))
            self.round_bf16(t + 4, t + 4)
            a("v_mul_f32 v%d, v%d, v%d" % (t + 6, t + 4, t + 5))
            a("v_fma_f32 v%d, -v%d, v%d, v%d" % (t + 7, t + 6, t + 3, t + 4))
            a("v_fma_f32 v%d, v%d, v%d, v%d" % (dst, t + 7, t + 5, t + 6))

    def arrive(self, c):
        a = self.a
        self.lgkm0()
        a("v_mov_b32 v%d, %d" % (vT + 14, L_CNT + 4 * c)); a("v_mov_b32 v%d, 1" % (vT + 15))
        a("s_mov_b64 exec, 1")
        a("ds_add_u32 v%d, v%d" % (vT + 14, vT + 15))
        self.exec_all()
    def await_cnt(self, c, target):
        a = self.a
        lp = a.newlabel("Lcw"); ok = a.newlabel("Lcok")
        a("v_mov_b32 v%d, %d" % (vT + 14, L_CNT + 4 * c))
        a.label(lp)
        a("ds_read_b32 v%d, v%d" % (vT + 15, vT + 14))
        self.lgkm0()
        a("v_readfirstlane_b32 s%d, v%d" % (sT0, vT + 15))
        a("s_add_u32 s%d, s%d, 1" % (sSPIN, sSPIN))
        a("s_cmp_ge_u32 s%d, %d" % (sT0, target))
        a("s_cbranch_scc1 %s" % ok)
        a("s_cmp_gt_u32 s%d, 4000000" % sSPIN)
        a("s_cbranch_scc1 %s" % ok)
        a("s_sleep 1")
        a("s_branch %s" % lp)
        a.label(ok)

    def phaseq(self, hlast, A, PQ, PD):
        a = self.a; t = vT
        self.wait(hlast)
        self.stamp(3)
        for g in range(4):
            for tt in range(3):
                c = "0" if g == 0 else "v[%d:%d]" % (PD + 4 * tt, PD + 4 * tt + 3)
                B = PQ + 12 * g + 4 * tt
                a("v_mfma_f32_16x16x32_bf16 v[%d:%d], v[%d:%d], v[%d:%d], %s" % (PD + 4 * tt, PD + 4 * tt + 3, A[g], A[g] + 3, B, B + 3, c))
        self.tile_addr(t, 768, L_STG, sw=sWW)
        a("v_and_b32 v%d, 3, v%d" % (t + 2, vL)); a("v_mul_u32_u24 v%d, 1536, v%d" % (t + 2, t + 2))
        a("v_lshrrev_b32 v%d, 2, v%d" % (t + 6, vL)); a("v_min_u32 v%d, 11, v%d" % (t + 6, t + 6))
        a("s_mul_i32 s%d, s%d, 12" % (sT1, sWW)); a("v_add_u32 v%d, s%d, v%d" % (t + 6, sT1, t + 6))
        a("v_lshl_add_u32 v%d, v%d, 4, v%d" % (t + 3, t + 6, t + 2))
        a("s_mul_i32 s%d, s2, %d" % (sT1, QP_STRIDE))
        a("v_lshl_add_u32 v%d, v%d, 4, s%d" % (t + 5, t + 6, sT1))
        self.exec_valid()
        for tt in range(3): a("ds_write_b128 v%d, v[%d:%d] offset:%d" % (t, PD + 4 * tt, PD + 4 * tt + 3, 256 * tt))
        self.exec_all()
        self.arrive(0)
        self.epoch_finish()
        self.await_cnt(0, 4)
        self.stamp(4)
        R = PD
        a("ds_read_b128 v[%d:%d], v%d offset:%d" % (R, R + 3, t + 3, L_STG))
        a("ds_read_b128 v[%d:%d], v%d offset:%d" % (R + 4, R + 7, t + 3, L_STG + 768))
        self.lgkm0()
        self.pk_add(R, R, R + 4); self.pk_add(R + 2, R + 2, R + 6)
        a("s_nop 1")
        for m in ("quad_perm:[1,0,3,2]", "quad_perm:[2,3,0,1]"):
            for r in (R, R + 1, R + 2, R + 3): a("v_add_f32_dpp v%d, v%d, v%d %s%s" % (r, r, r, m, DPP_ALL))
        self.tagit([R, R + 1, R + 2, R + 3])
        self.exec_set(0x11111111, 0x00001111)
        self.vm("global_store_dwordx4 v%d, v[%d:%d], s[%d:%d] sc1" % (t + 5, R, R + 3, sWS, sWS + 1))
        self.exec_all()
        self.stamp(5)

    GQ = vVD
    GU = vVD + 8
    GA = vVD + 32
    def q_addrs(self, normal):
        a = self.a; t = vT; GA = self.GA
        a("s_mul_i32 s%d, s%d, %d" % (sT0, sH, 5 * QP_STRIDE)); a("s_mul_i32 s%d, s%d, 192" % (sT1, sWW))
        a("s_add_u32 s%d, s%d, s%d" % (sT0, sT0, sT1))
        a("v_min_u32 v%d, 4, v%d" % (t + 1, vL7))
        a("v_mul_u32_u24 v%d, %d, v%d" % (t + 1, QP_STRIDE, t + 1))
        a("v_lshl_add_u32 v%d, v%d, 4, v%d" % (t + 2, vL8, t + 1))
        a("v_add_u32 v%d, s%d, v%d" % (GA, sT0, t + 2))
        if normal:
            a("s_mul_i32 s%d, s%d, 171" % (sT0, sCG)); a("s_lshr_b32 s%d, s%d, 9" % (sT0, sT0))
            a("s_mul_i32 s%d, s%d, 3" % (sT1, sT0)); a("s_sub_u32 s%d, s%d, s%d" % (sT1, sCG, sT1))
            a("s_add_u32 s%d, s%d, 32" % (sT0, sT0)); a("s_mul_i32 s%d, s%d, %d" % (sT0, sT0, 5 * QP_STRIDE))
            a("s_lshl_b32 s%d, s%d, 8" % (sT1, sT1)); a("s_add_u32 s%d, s%d, s%d" % (sT0, sT0, sT1))
            a("s_lshl_b32 s%d, s%d, 6" % (sT1, sWW)); a("s_add_u32 s%d, s%d, s%d" % (sT0, sT0, sT1))
            a("v_lshrrev_b32 v%d, 2, v%d" % (t + 2, vL8))
            a("v_lshl_add_u32 v%d, v%d, 4, v%d" % (t + 2, t + 2, t + 1))
            a("v_add_u32 v%d, s%d, v%d" % (GA + 1, sT0, t + 2))
            a("v_add_u32 v%d, %d, v%d" % (GA + 2, 40 * QP_STRIDE, GA + 1))
    def q_loads(self, normal):
        a = self.a; GQ, GU, GA = self.GQ, self.GU, self.GA
        for k in range(8): a("v_mov_b32 v%d, s%d" % (GQ + k, sTAG))
        if normal:
            for k in range(16): a("v_mov_b32 v%d, s%d" % (GU + k, sTAG))
        self.exec_set(0x1f1f1f1f, 0x1f1f1f1f)
        a("global_load_dwordx4 v[%d:%d], v%d, s[%d:%d] sc1" % (GQ, GQ + 3, GA, sWS, sWS + 1))
        if normal:
            a("global_load_dwordx4 v[%d:%d], v%d, s[%d:%d] sc1" % (GU, GU + 3, GA + 1, sWS, sWS + 1))
            a("global_load_dwordx4 v[%d:%d], v%d, s[%d:%d] offset:32 sc1" % (GU + 4, GU + 7, GA + 1, sWS, sWS + 1))
            a("global_load_dwordx4 v[%d:%d], v%d, s[%d:%d] sc1" % (GU + 8, GU + 11, GA + 2, sWS, sWS + 1))
            a("global_load_dwordx4 v[%d:%d], v%d, s[%d:%d] offset:32 sc1" % (GU + 12, GU + 15, GA + 2, sWS, sWS + 1))
        a("s_mov_b32 exec_hi, 0")
        a("global_load_dwordx4 v[%d:%d], v%d, s[%d:%d] offset:128 sc1" % (GQ + 4, GQ + 7, GA, sWS, sWS + 1))
        self.exec_all()
    def q_check(self, normal):
        g = [self.GQ, self.GQ + 4]
        if normal: g += [self.GU, self.GU + 4, self.GU + 8, self.GU + 12]
        self.check_tags(g, vT)
    def q_reduce(self, normal, WD, DF):
        a = self.a; t = vT; GQ, GU = self.GQ, self.GU
        regs = [GQ + k for k in range(8)]
        self.untag(regs)
        self.reduce8(regs)
        for i in range(2):
            a("v_cvt_pk_bf16_f32 v%d, v%d, v%d" % (t + 2 * i, GQ + 4 * i, GQ + 4 * i + 1))
            a("v_cvt_pk_bf16_f32 v%d, v%d, v%d" % (t + 2 * i + 1, GQ + 4 * i + 2, GQ + 4 * i + 3))
        a("s_mul_i32 s%d, s%d, 96" % (sT0, sWW)); a("s_add_u32 s%d, s%d, %d" % (sT0, sT0, L_Q))
        a("v_lshl_add_u32 v%d, v%d, 3, s%d" % (t + 6, vL8, sT0))
        self.exec_set(0x01010101, 0x01010101)
        a("ds_write_b64 v%d, v[%d:%d]" % (t + 6, t, t + 1))
        a("s_mov_b32 exec_hi, 0")
        a("ds_write_b64 v%d, v[%d:%d] offset:64" % (t + 6, t + 2, t + 3))
        self.exec_all()
        self.arrive(1)
        self.stamp(7)
        if normal:
            a("v_and_b32 v%d, 3, v%d" % (t, vL8))
            for k in (1, 2, 3): a("v_cmp_eq_u32 s[%d:%d], %d, v%d" % (sM0 + 2 * k, sM0 + 2 * k + 1, k, t))
            a("s_nop 0")
            for q in range(4):
                for k in (1, 2, 3):
                    a("v_cndmask_b32 v%d, v%d, v%d, s[%d:%d]" % (GU + 4 * q, GU + 4 * q, GU + 4 * q + k, sM0 + 2 * k, sM0 + 2 * k + 1))
            sel = [GU, GU + 4, GU + 8, GU + 12]
            self.untag(sel)
            self.reduce8(sel)
            for g, u in ((GU, GU + 8), (GU + 4, GU + 12)):
                self.round_bf16(g, g); self.round_bf16(u, u)
                self.silu(g, g, t + 3)
                self.round_bf16(g, g)
                a("v_mul_f32 v%d, v%d, v%d" % (g, g, u))
            A0, A1 = t + 4, t + 8
            self.build_A(A0, GU); self.build_A(A1, GU + 4)
            a("s_nop 1")
            a("v_mfma_f32_16x16x32_bf16 v[%d:%d], v[%d:%d], v[%d:%d], 0" % (DF, DF + 3, A0, A0 + 3, WD, WD + 3))
            a("v_mfma_f32_16x16x32_bf16 v[%d:%d], v[%d:%d], v[%d:%d], v[%d:%d]" % (DF, DF + 3, A1, A1 + 3, WD + 4, WD + 7, DF, DF + 3))
            self.tile_addr(t + 12, 256, L_F, sw=sWW)
            a("s_nop 4")
            self.exec_valid()
            a("ds_write_b128 v%d, v[%d:%d]" % (t + 12, DF, DF + 3))
            self.exec_all()
            self.arrive(2)
    def f_publish(self):
        a = self.a; t = vT; R = vVD + 40
        self.await_cnt(2, 4)
        a("v_and_b32 v%d, 3, v%d" % (t, vL)); a("v_lshlrev_b32 v%d, 9, v%d" % (t, t))
        a("v_lshrrev_b32 v%d, 2, v%d" % (t + 1, vL))
        a("v_lshl_add_u32 v%d, v%d, 4, v%d" % (t, t + 1, t))
        a("ds_read_b128 v[%d:%d], v%d offset:%d" % (R, R + 3, t, L_F))
        a("ds_read_b128 v[%d:%d], v%d offset:%d" % (R + 4, R + 7, t, L_F + 256))
        a("s_mul_i32 s%d, s2, %d" % (sT3, OUT2_STRIDE)); a("s_add_u32 s%d, s%d, 384" % (sT3, sT3))
        a("v_lshlrev_b32 v%d, 4, v%d" % (t + 1, t + 1)); a("v_add_u32 v%d, s%d, v%d" % (t + 1, sT3, t + 1))
        self.lgkm0()
        self.pk_add(R, R, R + 4); self.pk_add(R + 2, R + 2, R + 6)
        a("s_nop 1")
        for m in ("quad_perm:[1,0,3,2]", "quad_perm:[2,3,0,1]"):
            for k in range(4): a("v_add_f32_dpp v%d, v%d, v%d %s%s" % (R + k, R + k, R + k, m, DPP_ALL))
        self.tagit([R, R + 1, R + 2, R + 3])
        self.exec_set(0x11111111, 0x11111111)
        self.vm("global_store_dwordx4 v%d, v[%d:%d], s[%d:%d] sc1" % (t + 1, R, R + 3, sOUT2, sOUT2 + 1), "w4")
        self.exec_all()
    def read_qf(self):
        a = self.a
        a("v_lshlrev_b32 v%d, 4, v%d" % (vT, vL7))
        for t in range(3): a("ds_read_b128 v[%d:%d], v%d offset:%d" % (vQF + 4 * t, vQF + 4 * t + 3, vT, L_Q + 128 * t))
        self.lgkm0()
    def qk_groups(self, groups):
        a = self.a
        for t in range(3):
            for v in range(4):
                for g in groups:
                    k = vKD + 12 * g + 4 * t + v
                    src2 = "0" if (t == 0 and v == 0) else "v%d" % (vSC + g)
                    a("v_dot2_f32_bf16 v%d, v%d, v%d, %s" % (vSC + g, k, vQF + 4 * t + v, src2))
    def softmax(self):
        a = self.a; t = vT
        a("s_nop 2")
        self.reduce8([vSC + g for g in range(8)])
        a("s_mov_b32 s%d, 0x%08x" % (sT0, SCALE))
        for g in range(0, 8, 2):
            a("v_cvt_pk_bf16_f32 v%d, v%d, v%d" % (t, vSC + g, vSC + g + 1))
            a("v_lshlrev_b32 v%d, 16, v%d" % (vSC + g, t))
            a("v_and_b32 v%d, 0xffff0000, v%d" % (vSC + g + 1, t))
            a("v_mul_f32 v%d, s%d, v%d" % (vSC + g, sT0, vSC + g))
            a("v_mul_f32 v%d, s%d, v%d" % (vSC + g + 1, sT0, vSC + g + 1))
            a("v_cvt_pk_bf16_f32 v%d, v%d, v%d" % (t, vSC + g, vSC + g + 1))
            a("v_lshlrev_b32 v%d, 16, v%d" % (vSC + g, t))
            a("v_and_b32 v%d, 0xffff0000, v%d" % (vSC + g + 1, t))
        a("v_max3_f32 v%d, v%d, v%d, v%d" % (t, vSC, vSC + 1, vSC + 2))
        a("v_max3_f32 v%d, v%d, v%d, v%d" % (t + 1, vSC + 3, vSC + 4, vSC + 5))
        a("v_max3_f32 v%d, v%d, v%d, v%d" % (t, t, vSC + 6, vSC + 7))
        a("v_max_f32 v%d, v%d, v%d" % (t, t, t + 1))
        self.slots_reduce_sgpr(t, "v_max_f32", sMW)
        a("s_mov_b32 s%d, 0x%08x" % (sT0, LOG2E))
        for g in range(8):
            a("v_subrev_f32 v%d, s%d, v%d" % (vSC + g, sMW, vSC + g))
            a("v_mul_f32 v%d, s%d, v%d" % (vSC + g, sT0, vSC + g))
            a("v_exp_f32 v%d, v%d" % (vSC + g, vSC + g))
        a("s_nop 0")
        a("v_add_f32 v%d, v%d, v%d" % (t, vSC, vSC + 1)); a("v_add_f32 v%d, v%d, v%d" % (t + 1, vSC + 2, vSC + 3))
        a("v_add_f32 v%d, v%d, v%d" % (t + 2, vSC + 4, vSC + 5)); a("v_add_f32 v%d, v%d, v%d" % (t + 3, vSC + 6, vSC + 7))
        a("v_add_f32 v%d, v%d, v%d" % (t, t, t + 1)); a("v_add_f32 v%d, v%d, v%d" % (t + 2, t + 2, t + 3))
        a("v_add_f32 v%d, v%d, v%d" % (t, t, t + 2))
        self.slots_reduce_sgpr(t, "v_add_f32", sLW)
        a("s_lshl_b32 s%d, s%d, 3" % (sT0, sW)); a("s_add_u32 s%d, s%d, %d" % (sT0, sT0, L_ML))
        a("v_mov_b32 v%d, s%d" % (t, sT0))
        a("v_mov_b32 v%d, s%d" % (t + 2, sMW)); a("v_mov_b32 v%d, s%d" % (t + 3, sLW))
        a("s_mov_b64 exec, 1")
        a("ds_write_b64 v%d, v[%d:%d]" % (t, t + 2, t + 3))
        self.exec_all()
        self.arrive(3)
    def build_PA(self):
        for g in range(8): self.build_A(vKD + 4 * g, vSC + g)
    def pv_group(self, g):
        DA = vKD + 32
        for t in range(3):
            B = vVD + 12 * g + 4 * t
            c = "0" if g == 0 else "v[%d:%d]" % (DA + 4 * t, DA + 4 * t + 3)
            self.a("v_mfma_f32_16x16x32_bf16 v[%d:%d], v[%d:%d], v[%d:%d], %s" % (DA + 4 * t, DA + 4 * t + 3, vKD + 4 * g, vKD + 4 * g + 3, B, B + 3, c))
    def wg_factor(self):
        a = self.a; t = vT
        self.await_cnt(3, 8)
        a("v_lshlrev_b32 v%d, 3, v%d" % (t, vL7))
        a("ds_read_b64 v[%d:%d], v%d offset:%d" % (t + 2, t + 3, t, L_ML))
        self.lgkm0()
        a("v_mov_b32 v%d, v%d" % (t + 4, t + 2))
        a("s_nop 1")
        self.reduce8([t + 4], "v_max_f32")
        a("s_mov_b32 s%d, 0x%08x" % (sT0, LOG2E))
        a("v_sub_f32 v%d, s%d, v%d" % (vFAC, sMW, t + 4))
        a("v_mul_f32 v%d, s%d, v%d" % (vFAC, sT0, vFAC))
        a("v_exp_f32 v%d, v%d" % (vFAC, vFAC))
        lab = a.newlabel("Lskip_ml")
        a("s_cmp_eq_u32 s%d, 0" % sW); a("s_cbranch_scc0 %s" % lab)
        a("v_sub_f32 v%d, v%d, v%d" % (t + 5, t + 2, t + 4))
        a("v_mul_f32 v%d, s%d, v%d" % (t + 5, sT0, t + 5))
        a("v_exp_f32 v%d, v%d" % (t + 5, t + 5)); a("s_nop 0")
        a("v_mul_f32 v%d, v%d, v%d" % (t + 5, t + 5, t + 3))
        a("s_nop 1")
        self.reduce8([t + 5])
        a("v_mov_b32 v%d, v%d\nv_mov_b32 v%d, v%d" % (t + 6, t + 4, t + 7, t + 5))
        self.tagit([t + 4, t + 5, t + 6, t + 7])
        a("s_mul_i32 s%d, s2, %d" % (sT1, OUT2_STRIDE)); a("v_mov_b32 v%d, s%d" % (t, sT1))
        a("s_mov_b64 exec, 1")
        self.vm("global_store_dwordx4 v%d, v[%d:%d], s[%d:%d] sc1" % (t, t + 4, t + 7, sOUT2, sOUT2 + 1), "w0")
        self.exec_all()
        a.label(lab)
    def pv_stage(self):
        a = self.a; t = vT; DA = vKD + 32
        self.tile_addr(t, 768, L_STG)
        a("s_nop 3")
        for k in range(12): a("v_mul_f32 v%d, v%d, v%d" % (DA + k, vFAC, DA + k))
        self.exec_valid()
        for tt in range(3): a("ds_write_b128 v%d, v[%d:%d] offset:%d" % (t, DA + 4 * tt, DA + 4 * tt + 3, 256 * tt))
        self.exec_all()
    def wo_loads(self):
        a = self.a; WO = vKD + 48
        a("v_mul_u32_u24 v%d, 5120, v%d" % (vX + 13, vL8))
        a("v_lshl_add_u32 v%d, v%d, 4, v%d" % (vX + 13, vL7, vX + 13))
        for r in range(4):
            self.vm("global_load_dwordx4 v[%d:%d], v%d, s[%d:%d] offset:%d %s" % (WO + 4 * r, WO + 4 * r + 3, vX + 13, sWO, sWO + 1, 1280 * r, self.nt))
    def wo_base(self):
        a = self.a
        a("s_lshl_b32 s%d, s%d, 3" % (sT1, sCG)); a("s_add_u32 s%d, s%d, s%d" % (sT1, sT1, sW))
        a("s_lshl_b32 s%d, s%d, 7" % (sT3, sRB))
        a("s_mul_i32 s%d, s%d, %d" % (sT2, sT1, 32 * 1280)); a("s_add_u32 s%d, s%d, s%d" % (sT2, sT2, sT3))
        a("s_add_u32 s%d, s%d, s%d" % (sWO, sWO, sT2)); a("s_addc_u32 s%d, s%d, 0" % (sWO + 1, sWO + 1))

    def tail_publish_o(self):
        a = self.a; t = vT
        a("v_min_u32 v%d, 5, v%d" % (t + 1, vL8))
        a("s_mul_i32 s%d, s%d, 96" % (sT0, sW))
        a("v_lshl_add_u32 v%d, v%d, 4, s%d" % (t + 1, t + 1, sT0))
        a("v_mul_u32_u24 v%d, 1536, v%d" % (t + 2, vL7))
        a("v_add_u32 v%d, v%d, v%d" % (t + 1, t + 1, t + 2))
        a("s_mul_i32 s%d, s%d, 6144" % (sT0, sH)); a("s_mul_i32 s%d, s%d, 768" % (sT1, sW))
        a("s_add_u32 s%d, s%d, s%d" % (sT0, sT0, sT1)); a("s_lshl_b32 s%d, s%d, 4" % (sT1, sJ))
        a("s_add_u32 s%d, s%d, s%d" % (sT0, sT0, sT1))
        a("v_lshl_add_u32 v%d, v%d, 7, s%d" % (t + 3, vL8, sT0))
        self.lgkm0()
        a("s_barrier")
        self.stamp(10)
        R = vX
        a("ds_read_b128 v[%d:%d], v%d offset:%d" % (R, R + 3, t + 1, L_STG))
        a("ds_read_b128 v[%d:%d], v%d offset:%d" % (R + 4, R + 7, t + 1, L_STG + 768))
        self.lgkm0()
        self.pk_add(R, R, R + 4); self.pk_add(R + 2, R + 2, R + 6)
        a("s_nop 1")
        self.reduce8([R, R + 1, R + 2, R + 3])
        self.tagit([R, R + 1, R + 2, R + 3])
        self.exec_set(0x01010101, 0x00000101)
        a("global_store_dwordx4 v%d, v[%d:%d], s[%d:%d] sc1" % (t + 3, R, R + 3, sO, sO + 1))
        self.exec_all()
    def hop1_wo(self):
        a = self.a; t = vT; R = vX + 4; M = vX + 8
        a("s_lshl_b32 s%d, s%d, 3" % (sT0, sCG)); a("s_add_u32 s%d, s%d, s%d" % (sT0, sT0, sW))
        a("s_mul_i32 s%d, s%d, 171" % (sT1, sT0)); a("s_lshr_b32 s%d, s%d, 10" % (sT1, sT1))
        a("s_mul_i32 s%d, s%d, 6" % (sT2, sT1)); a("s_sub_u32 s%d, s%d, s%d" % (sT2, sT0, sT2))
        if self.mapping == "lin":
            a("s_lshl_b32 s%d, s%d, 3" % (sT3, sT1)); a("v_add_u32 v%d, s%d, v%d" % (t + 7, sT3, vL7))
        else:
            a("s_lshr_b32 s%d, s%d, 2" % (sT3, sT1)); a("s_and_b32 s%d, s%d, 3" % (sT0, sT1))
            a("s_lshl_b32 s%d, s%d, 3" % (sT0, sT0)); a("s_add_u32 s%d, s%d, s%d" % (sT3, sT3, sT0))
            a("v_lshl_add_u32 v%d, v%d, 5, s%d" % (t + 7, vL7, sT3))
        a("v_mul_u32_u24 v%d, %d, v%d" % (t + 7, OUT2_STRIDE, t + 7))
        a("s_mul_i32 s%d, s%d, 6144" % (sT1, sT1)); a("s_lshl_b32 s%d, s%d, 10" % (sT2, sT2))
        a("s_add_u32 s%d, s%d, s%d" % (sT1, sT1, sT2))
        a("v_lshl_add_u32 v%d, v%d, 4, s%d" % (t + 8, vL, sT1))
        ldm = "global_load_dwordx4 v[%d:%d], v%d, s[%d:%d] sc1" % (M, M + 3, t + 7, sOUT2, sOUT2 + 1)
        ld = "global_load_dwordx4 v[%d:%d], v%d, s[%d:%d] sc1" % (R, R + 3, t + 8, sO, sO + 1)
        a(ldm); a(ld)
        self.tile_addr(t + 9, 256, L_S)
        a("s_waitcnt vmcnt(1)")
        def mlre(): a(ldm)
        self.poll_retry("ml", lambda: self.check_tags([M], t), mlre, sleep=1)
        self.untag([M, M + 1])
        a("v_mov_b32 v%d, v%d" % (t, M)); a("s_nop 1")
        self.reduce8([t], "v_max_f32")
        a("s_mov_b32 s%d, 0x%08x" % (sT0, LOG2E))
        a("v_sub_f32 v%d, v%d, v%d" % (t, M, t)); a("v_mul_f32 v%d, s%d, v%d" % (t, sT0, t))
        a("v_exp_f32 v%d, v%d" % (t, t)); a("s_nop 0")
        a("v_mul_f32 v%d, v%d, v%d" % (t + 1, t, M + 1)); a("s_nop 1")
        self.reduce8([t + 1])
        a("v_rcp_f32 v%d, v%d" % (t + 1, t + 1)); a("s_nop 0")
        a("v_mul_f32 v%d, v%d, v%d" % (t + 2, t, t + 1))
        a("s_waitcnt vmcnt(0)")
        self.poll_retry("o", lambda: self.check_tags([R], t), lambda: a(ld), sleep=self.o.get("osleep", 1))
        self.tstamp(11)
        self.untag([R, R + 1, R + 2, R + 3])
        for k in range(4): a("v_mul_f32 v%d, v%d, v%d" % (R + k, t + 2, R + k))
        self.reduce8([R, R + 1, R + 2, R + 3])
        A = vKD
        for r in range(4): self.build_A(A + 4 * r, R + r)
        WO = vKD + 48; DS = vKD + 44
        a("s_nop 1")
        for r in range(4):
            c = "0" if r == 0 else "v[%d:%d]" % (DS, DS + 3)
            a("v_mfma_f32_16x16x32_bf16 v[%d:%d], v[%d:%d], v[%d:%d], %s" % (DS, DS + 3, A + 4 * r, A + 4 * r + 3, WO + 4 * r, WO + 4 * r + 3, c))
        a("s_nop 7")
        self.exec_valid()
        a("ds_write_b128 v%d, v[%d:%d]" % (t + 9, DS, DS + 3))
        self.exec_all()
        self.lgkm0()
        a("s_barrier")
        lab = a.newlabel("Lskip_s")
        a("s_cmp_eq_u32 s%d, 0" % sW); a("s_cbranch_scc0 %s" % lab)
        a("s_mul_i32 s%d, s2, %d" % (sT3, OUT2_STRIDE)); a("s_add_u32 s%d, s%d, 128" % (sT3, sT3))
        self.reduce16_publish(L_S, sT3, vX)
        self.tstamp(12)
        a.label(lab)
    def reduce16_publish(self, lbase, goff, R):
        a = self.a; t = vT
        a("v_and_b32 v%d, 3, v%d" % (t, vL)); a("v_lshlrev_b32 v%d, 10, v%d" % (t, t))
        a("v_lshrrev_b32 v%d, 2, v%d" % (t + 1, vL))
        a("v_lshl_add_u32 v%d, v%d, 4, v%d" % (t, t + 1, t))
        for k in range(4): a("ds_read_b128 v[%d:%d], v%d offset:%d" % (R + 4 * k, R + 4 * k + 3, t, lbase + 256 * k))
        a("v_lshlrev_b32 v%d, 4, v%d" % (t + 1, t + 1)); a("v_add_u32 v%d, s%d, v%d" % (t + 1, goff, t + 1))
        self.lgkm0()
        for k in (0, 2):
            self.pk_add(R + k, R + k, R + 4 + k); self.pk_add(R + 8 + k, R + 8 + k, R + 12 + k)
        for k in (0, 2): self.pk_add(R + k, R + k, R + 8 + k)
        a("s_nop 0")
        for m in ("quad_perm:[1,0,3,2]", "quad_perm:[2,3,0,1]"):
            for k in range(4): a("v_add_f32_dpp v%d, v%d, v%d %s%s" % (R + k, R + k, R + k, m, DPP_ALL))
        self.tagit([R, R + 1, R + 2, R + 3])
        self.exec_set(0x11111111, 0x11111111)
        a("global_store_dwordx4 v%d, v[%d:%d], s[%d:%d] sc1" % (t + 1, R, R + 3, sOUT2, sOUT2 + 1))
        self.exec_all()
    def final(self):
        a = self.a; t = vT
        lab = a.newlabel("Lskip_fin")
        a("s_cmp_eq_u32 s%d, 0" % sW); a("s_cbranch_scc0 %s" % lab)
        a("s_cmp_lt_u32 s2, 250"); a("s_cbranch_scc0 %s" % lab)
        a("s_sub_u32 s%d, s2, 240" % sT3)
        a("v_lshrrev_b32 v%d, 4, v%d" % (t, vL))
        a("v_mul_u32_u24 v%d, %d, v%d" % (t, 10 * OUT2_STRIDE, t))
        a("v_and_b32 v%d, 15, v%d" % (t + 1, vL))
        a("v_lshl_add_u32 v%d, v%d, 4, v%d" % (t, t + 1, t))
        a("s_mul_i32 s%d, s%d, %d" % (sT0, sT3, OUT2_STRIDE))
        a("v_add_u32 v%d, s%d, v%d" % (t, sT0, t))
        AD = vKD
        for i in range(6): a("v_add_u32 v%d, %d, v%d" % (AD + i, i * 40 * OUT2_STRIDE, t))
        RF = vKD + 8; RS = vKD + 32
        a("s_lshl_b32 s%d, s%d, 7" % (sT0, sT3))
        a("v_lshl_add_u32 v%d, v%d, 3, s%d" % (t + 2, t + 1, sT0))
        XR = vKD + 56
        a("global_load_dwordx2 v[%d:%d], v%d, s[%d:%d]" % (XR, XR + 1, t + 2, sX, sX + 1))
        def loads(R, off):
            for i in range(6):
                a("global_load_dwordx4 v[%d:%d], v%d, s[%d:%d] offset:%d sc1" % (R + 4 * i, R + 4 * i + 3, AD + i, sOUT2, sOUT2 + 1, off))
        def check(R): self.check_tags([R + 4 * i for i in range(6)], t + 3)
        def total(R):
            self.untag([R + k for k in range(24)])
            for i in (1, 3, 5):
                for k in (0, 2): self.pk_add(R + 4 * (i - 1) + k, R + 4 * (i - 1) + k, R + 4 * i + k)
            for i in (2, 4):
                for k in (0, 2): self.pk_add(R + k, R + k, R + 4 * i + k)
            for sw in ("v_permlane16_swap_b32", "v_permlane32_swap_b32"):
                for k in range(4): a("v_mov_b32 v%d, v%d" % (R + 4 + k, R + k))
                a("s_nop 1")
                for k in range(4): a("%s v%d, v%d" % (sw, R + k, R + 4 + k))
                a("s_nop 1")
                for k in range(4): a("v_add_f32 v%d, v%d, v%d" % (R + k, R + k, R + 4 + k))
        loads(RF, 384)
        a("s_waitcnt vmcnt(0)")
        self.poll_retry("f", lambda: check(RF), lambda: loads(RF, 384))
        loads(RS, 128)
        total(RF)
        for k in range(4):
            self.round_bf16(RF + k, RF + k); self.silu(RF + k, RF + k, t + 5); self.round_bf16(RF + k, RF + k)
        a("v_lshlrev_b32 v%d, 16, v%d" % (t + 6, XR)); a("v_and_b32 v%d, 0xffff0000, v%d" % (t + 7, XR))
        a("v_lshlrev_b32 v%d, 16, v%d" % (t + 8, XR + 1)); a("v_and_b32 v%d, 0xffff0000, v%d" % (t + 9, XR + 1))
        a("s_waitcnt vmcnt(0)")
        self.poll_retry("s", lambda: check(RS), lambda: loads(RS, 128), sleep=self.o.get("ssleep", 1))
        self.tstamp(13)
        total(RS)
        for k in range(4):
            self.round_bf16(RS + k, RS + k)
            a("v_mul_f32 v%d, v%d, v%d" % (RS + k, RS + k, RF + k))
            self.round_bf16(RS + k, RS + k)
            a("v_add_f32 v%d, v%d, v%d" % (RS + k, RS + k, t + 6 + k))
        a("v_cvt_pk_bf16_f32 v%d, v%d, v%d" % (t + 10, RS, RS + 1))
        a("v_cvt_pk_bf16_f32 v%d, v%d, v%d" % (t + 11, RS + 2, RS + 3))
        a("s_mov_b64 exec, 0xffff")
        a("global_store_dwordx2 v%d, v[%d:%d], s[%d:%d]" % (t + 2, t + 10, t + 11, sOUT, sOUT + 1))
        lab2 = a.newlabel("Lskip_ep")
        a("s_cmp_eq_u32 s2, 240"); a("s_cbranch_scc0 %s" % lab2)
        a("s_mov_b64 exec, 1")
        a("v_mov_b32 v%d, 0x%x" % (t + 12, WS_EPOCH)); a("v_mov_b32 v%d, s%d" % (t + 13, sE))
        a("global_store_dword v%d, v%d, s[%d:%d]" % (t + 12, t + 13, sWS, sWS + 1))
        a.label(lab2)
        self.exec_all()
        self.tstamp(14)
        a.label(lab)
    def write_stamps(self):
        if not self.stamps: return
        a = self.a
        lab = a.newlabel("Lskip_st")
        a("s_cmp_eq_u32 s%d, %d" % (sW, self.o.get("stamp_wave", 0))); a("s_cbranch_scc0 %s" % lab)
        self.stamp(15)
        self.lgkm0()
        a("s_add_u32 s%d, s%d, 0x%x" % (sWS, sWS, STAMP_OFF)); a("s_addc_u32 s%d, s%d, 0" % (sWS + 1, sWS + 1))
        a("s_lshl_b32 s%d, s2, 7" % sT0); a("v_mov_b32 v%d, s%d" % (vT, sT0))
        a("s_mov_b64 exec, 1")
        for k in range(0, 16, 2):
            for q in range(4): a("v_mov_b32 v%d, s%d" % (vT + 4 + q, sSTAMP + 2 * k + q))
            a("global_store_dwordx4 v%d, v[%d:%d], s[%d:%d] offset:%d" % (vT, vT + 4, vT + 7, sWS, sWS + 1, 8 * k))
            a("s_nop 1")
        a.label(lab)
    def attention(self, hK, hV, after_issue=None):
        a = self.a
        self.await_cnt(1, 4)
        self.read_qf()
        self.wait(hK[11]); self.qk_groups([0, 1, 2, 3])
        self.wait(hK[23]); self.qk_groups([4, 5, 6, 7])
        self.softmax()
        self.stamp(8)
        self.build_PA()
        for g in range(7):
            self.wait(hV[3 * g + 2]); self.pv_group(g)

    def streamer(self, normal):
        a = self.a; o = self.o
        self.ops = []
        a("s_setprio %d" % o.get("prio_s", 2))
        DS = o.get("ds", 6)
        hs = [self.kv_load("K", 0), self.kv_load("K", 1)]
        self.b0()
        self.epoch_load()
        if o.get("pf", 1): self.code_prefetch(vX)
        items = [("K", i) for i in range(2, 24)] + [("V", i) for i in range(24)]
        for k, (m, i) in enumerate(items):
            n = len(hs)
            if DS and n - DS >= 0: self.wait(hs[n - DS])
            hs.append(self.kv_load(m, i))
            if n == 4: self.consts()
        hK = hs[:24]; hV = hs[24:]
        self.stamp(1)
        if o.get("so", 0):
            if normal:
                self.wo_base(); self.wo_loads()
            a("s_waitcnt vmcnt(0)")
            self.stamp(9)
            return
        self.lgkm0()
        self.epoch_finish()
        if normal: self.wo_base()
        self.attention(hK, hV)
        self.wait(hV[23]); self.pv_group(7)
        self.stamp(9)
        if normal:
            a("s_setprio %d" % o.get("prio_wo", 0))
            self.wo_loads()
        self.wg_factor()
        self.pv_stage()

    def b0(self):
        a = self.a
        a("v_mov_b32 v%d, %d\nv_mov_b32 v%d, 0\nv_mov_b32 v%d, 0\nv_mov_b32 v%d, 0\nv_mov_b32 v%d, 0" % (vT + 8, L_CNT, vT + 10, vT + 11, vT + 12, vT + 13))
        a("s_mov_b64 exec, 1")
        a("ds_write_b128 v%d, v[%d:%d]" % (vT + 8, vT + 10, vT + 13))
        self.exec_all()
        a("s_waitcnt lgkmcnt(0)")
        a("s_barrier")

    def worker(self, normal):
        a = self.a; o = self.o; t = vT
        self.ops = []
        a("s_setprio 3")
        a("s_sub_u32 s%d, s%d, 4" % (sWW, sW))
        PQ = vVD; PD = vVD + 48; WD = vVD + 88; DF = vVD + 84
        NE = o.get("ne", 0) if normal else o.get("ne_l", 8)
        hK = []
        nt = self.nt
        def gl(reg, va, sb, off=0): return self.vm("global_load_dwordx4 v[%d:%d], v%d, s[%d:%d] offset:%d %s" % (reg, reg + 3, va, sb, sb + 1, off, nt))
        if normal:
            a("s_mul_i32 s%d, s2, 205" % sCT); a("s_lshr_b32 s%d, s%d, 10" % (sCT, sCT))
            a("s_mul_i32 s%d, s%d, 5" % (sRB5, sCT)); a("s_sub_u32 s%d, s2, s%d" % (sRB5, sRB5))
            a("s_cmp_lt_u32 s%d, 40" % sCT)
            a("s_cselect_b32 s%d, s%d, s%d" % (sPB, sWG, sWU)); a("s_cselect_b32 s%d, s%d, s%d" % (sPB + 1, sWG + 1, sWU + 1))
            a("s_cselect_b32 s%d, 32, 40" % sT1)
            a("s_cmp_lt_u32 s%d, 32" % sCT)
            a("s_cselect_b32 s%d, s%d, s%d" % (sPB, sWQ, sPB)); a("s_cselect_b32 s%d, s%d, s%d" % (sPB + 1, sWQ + 1, sPB + 1))
            a("s_cselect_b32 s%d, 0, s%d" % (sT1, sT1))
            a("s_cselect_b32 s%d, 2, 0" % sSTR); a("s_lshl_b32 s%d, 3072, s%d" % (sSTR, sSTR))
            a("s_sub_u32 s%d, s%d, s%d" % (sT1, sCT, sT1)); a("s_mul_i32 s%d, s%d, 384" % (sT1, sT1))
            a("s_lshl_b32 s%d, s%d, 2" % (sT0, sRB5)); a("s_add_u32 s%d, s%d, s%d" % (sT0, sT0, sWW))
            a("s_lshl_b32 s%d, s%d, 5" % (sT0, sT0))
            a("s_mul_i32 s%d, s%d, s%d" % (sT2, sT0, sSTR)); a("s_add_u32 s%d, s%d, s%d" % (sT1, sT1, sT2))
            a("s_add_u32 s%d, s%d, s%d" % (sPB, sPB, sT1)); a("s_addc_u32 s%d, s%d, 0" % (sPB + 1, sPB + 1))
            a("v_mul_u32_u24 v%d, s%d, v%d" % (vX + 8, sSTR, vL8))
            a("v_lshl_add_u32 v%d, v%d, 4, v%d" % (vX + 8, vL7, vX + 8))
            a("s_lshl_b32 s%d, s%d, 3" % (sSTR, sSTR))
            a("v_lshlrev_b32 v%d, 2, v%d" % (t, vL))
            for k in range(5): hx = self.vm("global_load_dword v%d, v%d, s[%d:%d] offset:%d" % (vX + k, t, sX, sX + 1, 256 * k))
            a("v_add_u32 v%d, s%d, v%d" % (t + 1, sT0, vL8)); a("v_lshlrev_b32 v%d, 1, v%d" % (t + 1, t + 1))
            for g in range(4):
                hx = self.vm("global_load_ushort v%d, v%d, s[%d:%d] offset:%d" % (vQF + g, t + 1, sX, sX + 1, 16 * g))
            hlast = None
            for g in range(4):
                if g: a("v_add_u32 v%d, s%d, v%d" % (vX + 8, sSTR, vX + 8))
                for tt in range(3): hlast = gl(PQ + 12 * g + 4 * tt, vX + 8, sPB, 128 * tt)
                if g == 0:
                    self.b0()
                    self.epoch_load()
            a("s_lshl_b32 s%d, s%d, 2" % (sT1, sCG)); a("s_add_u32 s%d, s%d, s%d" % (sT1, sT1, sWW))
            a("s_mul_i32 s%d, s%d, %d" % (sT2, sT1, 16 * 1280)); a("s_lshl_b32 s%d, s%d, 7" % (sT3, sRB))
            a("s_add_u32 s%d, s%d, s%d" % (sT2, sT2, sT3))
            a("s_add_u32 s%d, s%d, s%d" % (sWD, sWD, sT2)); a("s_addc_u32 s%d, s%d, 0" % (sWD + 1, sWD + 1))
            self.stamp(1)
            if o.get("so", 0):
                a("v_mul_u32_u24 v%d, 1280, v%d" % (vX + 10, vL8))
                a("v_lshl_add_u32 v%d, v%d, 4, v%d" % (vX + 10, vL7, vX + 10))
                gl(WD, vX + 10, sWD)
                a("v_add_u32 v%d, %d, v%d" % (vX + 10, 8 * 1280, vX + 10))
                gl(WD + 4, vX + 10, sWD)
                self.wo_base()
                if o.get("so", 0) == 2:
                    a("s_waitcnt vmcnt(0)")
                    for _ in range(7): a("s_sleep 16")
                a("s_setprio %d" % o.get("prio_w", 1))
                for i in range(24): self.kv_load("K", i)
                for i in range(24): self.kv_load("V", i)
                self.stamp(8)
                self.wo_loads()
                a("s_waitcnt vmcnt(0)")
                self.stamp(9)
                return
            self.consts()
            A = [vSC, vSC + 4, vQF + 4, vQF + 8]
            self.layernorm(hx, [(vQF + g, vKD + 80 + g) for g in range(4)])
            for g in range(4): self.build_A(A[g], vKD + 80 + g)
            self.stamp(2)
            self.phaseq(hlast, A, PQ, PD)
            a("v_mul_u32_u24 v%d, 1280, v%d" % (vX + 10, vL8))
            a("v_lshl_add_u32 v%d, v%d, 4, v%d" % (vX + 10, vL7, vX + 10))
            gl(WD, vX + 10, sWD)
            a("v_add_u32 v%d, %d, v%d" % (vX + 10, 8 * 1280, vX + 10))
            gl(WD + 4, vX + 10, sWD)
            self.wo_base()
            hK += [self.kv_load("K", i) for i in range(NE)]
        else:
            hK += [self.kv_load("K", i) for i in range(2)]
            self.b0()
            self.epoch_load()
            hK += [self.kv_load("K", i) for i in range(2, NE)]
            self.stamp(1)
            if o.get("so", 0):
                for i in range(NE, 24): self.kv_load("K", i)
                for i in range(24): self.kv_load("V", i)
                a("s_waitcnt vmcnt(0)")
                self.stamp(9)
                return
            self.consts()
            self.lgkm0()
            self.epoch_finish()
        self.q_addrs(normal)
        for _ in range(o.get("qdelay", 0)): a("s_sleep 16")
        self.q_loads(normal)
        a("s_waitcnt vmcnt(0)")
        self.poll_retry("q", lambda: self.q_check(normal), lambda: self.q_loads(normal), sleep=o.get("qsleep", 2))
        self.stamp(6)
        self.ops = []
        self.q_reduce(normal, WD, DF)
        if normal:
            lab = a.newlabel("Lskip_f")
            a("s_cmp_eq_u32 s%d, 4" % sW); a("s_cbranch_scc0 %s" % lab)
            self.f_publish()
            a.label(lab)
        a("s_setprio %d" % o.get("prio_w", 1))
        KQ = o.get("kq", 10)
        self.dstamp(2)
        hK = [-1] * NE + [self.kv_load("K", i) for i in range(NE, 24)]
        self.dstamp(11)
        hV = [self.kv_load("V", i) for i in range(KQ)]
        self.dstamp(12)
        def W(h):
            if h >= 0: self.wait(h)
        self.await_cnt(1, 4)
        self.read_qf()
        W(hK[11]); self.dstamp(13); self.qk_groups([0, 1, 2, 3])
        hV += [self.kv_load("V", i) for i in range(KQ, KQ + 2)]
        W(hK[23]); self.dstamp(14); self.qk_groups([4, 5, 6, 7])
        hV += [self.kv_load("V", i) for i in range(KQ + 2, KQ + 4)]
        self.softmax()
        self.stamp(8)
        hV += [self.kv_load("V", i) for i in range(KQ + 4, 24)]
        self.dstamp(3)
        if normal: self.wo_loads()
        self.dstamp(4)
        self.build_PA()
        self.wg_factor()
        for g in range(8):
            self.wait(hV[3 * g + 2]); self.pv_group(g)
        self.stamp(9)
        self.pv_stage()

    def run_path(self, normal):
        a = self.a
        tag = "n" if normal else "l"
        a("s_cmp_ge_u32 s%d, 4" % sW)
        a("s_cbranch_scc1 L_worker_%s" % tag)
        self.streamer(normal)
        a("s_branch L_tail_%s" % tag)
        a.label("L_worker_%s" % tag)
        self.worker(normal)
        a.label("L_tail_%s" % tag)
        if self.o.get("so", 0):
            a("s_barrier")
            self.stamp(10)
            self.write_stamps()
            return
        self.tail_publish_o()
        if normal: self.hop1_wo()
        else: self.final()
        self.write_stamps()

    def generate(self):
        a = self.a
        self.prologue()
        if self.stamps:
            for k in range(1, 16): a("s_mov_b64 s[%d:%d], 0" % (sSTAMP + 2 * k, sSTAMP + 2 * k + 1))
        a("s_cmp_ge_u32 s2, 240")
        a("s_cbranch_scc1 L_light")
        self.run_path(True)
        a("s_endpgm")
        a.label("L_light")
        self.run_path(False)
        a.label("L_end")
        txt = wrap(a.text(), 256, 512, LDS_BYTES, vgpr=256, sgpr=96)
        return txt.replace("    s_endpgm\n.section", "    s_endpgm\nL_codeend:\n.section")

if __name__ == "__main__":
    import argparse
    ap = argparse.ArgumentParser()
    ap.add_argument("-o", default="k.s"); ap.add_argument("--D", type=int, default=3)
    ap.add_argument("--stamps", action="store_true"); ap.add_argument("--nt", default="nt")
    ap.add_argument("--mapping", default="lin"); ap.add_argument("--normp", action="store_true")
    ap.add_argument("--opt", action="append", default=[])
    args = ap.parse_args()
    opts = {}
    for kv in args.opt:
        k, v = kv.split("="); opts[k] = int(v)
    open(args.o, "w").write(Gen(args.D, args.stamps, args.nt, args.mapping, args.normp, opts).generate())
```

```python
import struct, sys
from asmlib import *

def f2u(x): return struct.unpack("<I", struct.pack("<f", x))[0]
SCALE = f2u(192 ** -0.5); LOG2E = f2u(1.4426950408889634); INV640 = f2u(1.0 / 640.0); EPS = f2u(1e-5)

WS_QP = 0x00000; QP_STRIDE = 768
WS_O = 0x80000
WS_OUT2 = 0xB0000; OUT2_STRIDE = 640
WS_EPOCH = 0xE0000
STAMP_OFF = 128 << 20
L_STG = 0
L_Q = 24576
L_F = 25088
L_S = 29184
L_CNT = 33280
L_ML = 33312
LDS_BYTES = 33408
sX, sK, sV, sWQ, sWO, sBX, sWG, sWU, sWD, sOUT, sDBG, sWS = 4, 6, 8, 10, 12, 14, 16, 18, 20, 22, 24, 26
sW = 3
sCG, sRB, sH, sJ = 28, 29, 30, 31
sT0, sT1, sT2, sT3 = 32, 33, 34, 35
sM0 = 36
sSPIN = 44
sMW, sLW, sMG, sLG = 45, 46, 47, 48
sO = 54; sOUT2 = 56
sE, sTAG4 = 58, 59
sWW = 49
sPB = 50
sSTR = 52
sCT, sRB5 = 53, 14
sSTAMP = 60
sSELA, sSELB, sSELC, sTAG = 92, 93, 94, 95
vL, vKO, vL8, vL7, vLDSW, vFF, vFAC = 1, 2, 3, 4, 5, 6, 7
vM = 8; vQF = 12; vSC = 24; vT = 32; vKD = 48; vVD = 144; vX = 240

DPP_ALL = " row_mask:0xf bank_mask:0xf"

class Gen:
    def __init__(self, D=3, stamps=False, nt="nt", mapping="lin", norm_p=False, opts=None):
        self.a = Asm(); self.D = D; self.stamps = stamps; self.nt = nt
        self.mapping = mapping; self.norm_p = norm_p; self.o = opts or {}
        self.ops = []
    def vm(self, text, role=None):
        self.a(text); self.ops.append(role); return len(self.ops) - 1
    def wait(self, h, role=None):
        n = sum(1 for r in self.ops[h + 1:] if r is None or (role is not None and r == role))
        assert n <= 63
        self.a("s_waitcnt vmcnt(%d)" % n)
    def stamp(self, k):
        if self.stamps: self.a("s_memrealtime s[%d:%d]" % (sSTAMP + 2 * k, sSTAMP + 2 * k + 1))
    def dstamp(self, k):
        if self.o.get("diag", 0): self.stamp(k)
    def tstamp(self, k):
        if not self.o.get("diag", 0): self.stamp(k)
    def lgkm0(self): self.a("s_waitcnt lgkmcnt(0)")
    def exec_set(self, lo, hi): self.a("s_mov_b32 exec_lo, 0x%08x\ns_mov_b32 exec_hi, 0x%08x" % (lo, hi))
    def exec_valid(self): self.exec_set(0x00ff00ff, 0xff00ff00)
    def exec_all(self): self.a("s_mov_b64 exec, -1")
    def allreduce_sgpr(self, v, op, sdst):
        a = self.a
        for m in ("quad_perm:[1,0,3,2]" + DPP_ALL, "quad_perm:[2,3,0,1]" + DPP_ALL, "row_half_mirror" + DPP_ALL, "row_mirror" + DPP_ALL,
                  "row_bcast:15 row_mask:0xa bank_mask:0xf", "row_bcast:31 row_mask:0xc bank_mask:0xf"):
            a("s_nop 1"); a("%s_dpp v%d, v%d, v%d %s" % (op, v, v, v, m))
        a("s_nop 1"); a("v_readlane_b32 s%d, v%d, 63" % (sdst, v)); a("s_nop 1")
    def slots_reduce_sgpr(self, v, op, sdst):
        a = self.a
        for m in ("row_ror:8" + DPP_ALL, "row_bcast:15 row_mask:0xa bank_mask:0xf", "row_bcast:31 row_mask:0xc bank_mask:0xf"):
            a("s_nop 1"); a("%s_dpp v%d, v%d, v%d %s" % (op, v, v, v, m))
        a("s_nop 1"); a("v_readlane_b32 s%d, v%d, 63" % (sdst, v)); a("s_nop 1")
    def reduce8(self, regs, op="v_add_f32"):
        a = self.a
        for m in ("quad_perm:[1,0,3,2]", "quad_perm:[2,3,0,1]", "row_half_mirror"):
            if len(regs) < 3: a("s_nop %d" % (2 - len(regs)))
            for r in regs: a("%s_dpp v%d, v%d, v%d %s%s" % (op, r, r, r, m, DPP_ALL))
    def round_bf16(self, dst, src):
        self.a("v_cvt_pk_bf16_f32 v%d, v%d, v%d" % (dst, src, src))
        self.a("v_and_b32 v%d, 0xffff0000, v%d" % (dst, dst))
    def build_A(self, d, src):
        a = self.a
        a("v_cvt_pk_bf16_f32 v%d, v%d, v%d" % (d + 3, src, src))
        for v in range(3): a("v_and_b32 v%d, v%d, v%d" % (d + v, d + 3, vM + v))
        a("v_and_b32 v%d, v%d, v%d" % (d + 3, d + 3, vM + 3))
    def silu(self, dst, src, t):
        a = self.a
        a("v_mul_f32 v%d, 0x%08x, v%d" % (t, LOG2E ^ 0x80000000, src))
        a("v_exp_f32 v%d, v%d" % (t, t)); a("s_nop 0")
        a("v_add_f32 v%d, 1.0, v%d" % (t, t))
        a("v_rcp_f32 v%d, v%d" % (t, t)); a("s_nop 0")
        a("v_mul_f32 v%d, v%d, v%d" % (dst, src, t))
    def pk_add(self, d, x, y):
        self.a("v_pk_add_f32 v[%d:%d], v[%d:%d], v[%d:%d]" % (d, d + 1, x, x + 1, y, y + 1))
    def tagit(self, regs):
        for r in regs: self.a("v_bfi_b32 v%d, v%d, s%d, v%d" % (r, vFF, sTAG, r))
    def untag(self, regs):
        for r in regs: self.a("v_and_b32 v%d, 0xffffff00, v%d" % (r, r))
    def gather_tags(self, dst, r):
        a = self.a
        a("v_perm_b32 v%d, v%d, v%d, s%d" % (dst, r + 1, r, sSELA))
        a("v_perm_b32 v%d, v%d, v%d, s%d" % (dst, r + 2, dst, sSELB))
        a("v_perm_b32 v%d, v%d, v%d, s%d" % (dst, r + 3, dst, sSELC))
    def check_tags(self, granules, t):
        a = self.a
        self.gather_tags(t, granules[0])
        if len(granules) == 1:
            a("v_cmp_ne_u32 vcc, s%d, v%d" % (sTAG4, t)); return
        a("v_xor_b32 v%d, s%d, v%d" % (t, sTAG4, t))
        for r in granules[1:]:
            self.gather_tags(t + 1, r)
            a("v_xor_b32 v%d, s%d, v%d" % (t + 1, sTAG4, t + 1))
            a("v_or_b32 v%d, v%d, v%d" % (t, t, t + 1))
        a("v_cmp_ne_u32 vcc, 0, v%d" % t)
    def poll_retry(self, name, check_fn, reload_fn, sleep=2):
        a = self.a
        ok = a.newlabel("Lok_" + name); re_ = a.newlabel("Lre_" + name)
        check_fn()
        a("s_cbranch_vccz %s" % ok)
        a.label(re_)
        a("s_add_u32 s%d, s%d, 1" % (sSPIN, sSPIN))
        a("s_cmp_gt_u32 s%d, 200000" % sSPIN)
        a("s_cbranch_scc1 %s" % ok)
        a("s_sleep %d" % sleep)
        reload_fn()
        a("s_waitcnt vmcnt(0)")
        check_fn()
        a("s_cbranch_vccnz %s" % re_)
        a.label(ok)
    def prologue(self):
        a = self.a
        a("s_load_dwordx16 s[4:19], s[0:1], 0")
        a("s_load_dwordx8 s[20:27], s[0:1], 64")
        self.stamp(0)
        if self.o.get("dbgtime", 0): a("s_memrealtime s[96:97]")
        a("s_cmp_ge_u32 s2, 256")
        a("s_cbranch_scc1 L_end")
        a("v_lshrrev_b32 v%d, 6, v0" % vT)
        a("v_and_b32 v%d, 63, v0" % vL)
        a("v_readfirstlane_b32 s%d, v%d" % (sW, vT))
        a("v_lshrrev_b32 v%d, 3, v%d" % (vL8, vL))
        a("v_and_b32 v%d, 7, v%d" % (vL7, vL))
        a("v_mul_u32_u24 v%d, 384, v%d" % (vKO, vL8))
        a("v_lshl_add_u32 v%d, v%d, 4, v%d" % (vKO, vL7, vKO))
        if self.mapping == "lin":
            a("s_mov_b32 s%d, s2" % sT3)
        else:
            a("s_and_b32 s%d, s2, 7" % sT0); a("s_lshr_b32 s%d, s2, 3" % sT1)
            a("s_and_b32 s%d, s%d, 3" % (sT2, sT1)); a("s_lshl_b32 s%d, s%d, 2" % (sT0, sT0))
            a("s_add_u32 s%d, s%d, s%d" % (sT0, sT0, sT2)); a("s_lshr_b32 s%d, s%d, 2" % (sT1, sT1))
            a("s_lshl_b32 s%d, s%d, 3" % (sT0, sT0)); a("s_add_u32 s%d, s%d, s%d" % (sT3, sT0, sT1))
        a("s_lshr_b32 s%d, s%d, 3" % (sH, sT3))
        a("s_and_b32 s%d, s%d, 7" % (sJ, sT3))
        a("s_lshl_b32 s%d, s%d, 3" % (sT0, sT3))
        a("s_add_u32 s%d, s%d, s%d" % (sT0, sT0, sW))
        a("s_mul_i32 s%d, s%d, 24576" % (sT0, sT0))
        a("s_mul_i32 s%d, s2, 205" % sCG)
        a("s_lshr_b32 s%d, s%d, 11" % (sCG, sCG))
        a("s_mul_i32 s%d, s%d, 10" % (sRB, sCG))
        a("s_sub_u32 s%d, s2, s%d" % (sRB, sRB))
        a("s_mov_b32 s%d, 0" % sSPIN)
        a("s_waitcnt lgkmcnt(0)")
        a("s_add_u32 s%d, s%d, s%d" % (sK, sK, sT0)); a("s_addc_u32 s%d, s%d, 0" % (sK + 1, sK + 1))
        a("s_add_u32 s%d, s%d, s%d" % (sV, sV, sT0)); a("s_addc_u32 s%d, s%d, 0" % (sV + 1, sV + 1))
    def kv_load(self, which, i):
        a = self.a
        base = sK if which == "K" else sV
        reg = (vKD if which == "K" else vVD) + 4 * i
        grp, t = divmod(i, 3)
        if grp > 0 and grp % 2 == 0 and t == 0:
            a("s_add_u32 s%d, s%d, 6144" % (base, base)); a("s_addc_u32 s%d, s%d, 0" % (base + 1, base + 1))
        off = (grp % 2) * 3072 + t * 128
        return self.vm("global_load_dwordx4 v[%d:%d], v%d, s[%d:%d] offset:%d %s" % (reg, reg + 3, vKO, base, base + 1, off, self.nt))
    def consts(self):
        a = self.a
        a("v_and_b32 v%d, 1, v%d" % (vT, vL))
        a("v_lshlrev_b32 v%d, 4, v%d" % (vT, vT))
        a("v_mov_b32 v%d, 0xffff" % (vT + 1))
        a("v_lshlrev_b32 v%d, v%d, v%d" % (vT + 1, vT, vT + 1))
        a("v_bfe_u32 v%d, v%d, 1, 2" % (vT + 2, vL))
        for v in range(4): a("v_cmp_eq_u32 s[%d:%d], %d, v%d" % (sM0 + 2 * v, sM0 + 2 * v + 1, v, vT + 2))
        a("s_nop 0")
        for v in range(4): a("v_cndmask_b32 v%d, 0, v%d, s[%d:%d]" % (vM + v, vT + 1, sM0 + 2 * v, sM0 + 2 * v + 1))
        a("v_bfe_u32 v%d, v%d, 4, 1" % (vT, vL))
        a("v_lshlrev_b32 v%d, 4, v%d" % (vT, vT))
        a("v_lshl_add_u32 v%d, v%d, 5, v%d" % (vLDSW, vL7, vT))
        a("v_mov_b32 v%d, 0xff" % vFF)
        a("s_mov_b32 s%d, 0x0c0c0400" % sSELA)
        a("s_mov_b32 s%d, 0x0c040100" % sSELB)
        a("s_mov_b32 s%d, 0x04020100" % sSELC)
        a("s_add_u32 s%d, s%d, 0x%x" % (sO, sWS, WS_O)); a("s_addc_u32 s%d, s%d, 0" % (sO + 1, sWS + 1))
        a("s_add_u32 s%d, s%d, 0x%x" % (sOUT2, sWS, WS_OUT2)); a("s_addc_u32 s%d, s%d, 0" % (sOUT2 + 1, sWS + 1))
    def epoch_load(self):
        self.a("s_load_dword s%d, s[%d:%d], 0x%x" % (sE, sWS, sWS + 1, WS_EPOCH))
    def epoch_finish(self):
        a = self.a
        a("s_add_u32 s%d, s%d, 1" % (sE, sE))
        a("s_and_b32 s%d, s%d, 0xff" % (sTAG, sE))
        a("s_mul_i32 s%d, s%d, 0x01010101" % (sTAG4, sTAG))
    def tile_addr(self, dst, stride, base, colshift=0, sw=None):
        a = self.a
        a("v_lshrrev_b32 v%d, 5, v%d" % (dst, vL))
        a("s_lshl_b32 s%d, s%d, 1" % (sT0, sW if sw is None else sw))
        a("v_add_u32 v%d, s%d, v%d" % (dst, sT0, dst))
        a("v_mul_u32_u24 v%d, %d, v%d" % (dst, stride, dst))
        if colshift: a("v_lshl_add_u32 v%d, v%d, %d, v%d" % (dst, vLDSW, colshift, dst))
        else: a("v_add_u32 v%d, v%d, v%d" % (dst, dst, vLDSW))
        if base: a("v_add_u32 v%d, %d, v%d" % (dst, base, dst))
    def code_prefetch(self, dst):
        a = self.a
        a("s_getpc_b64 s[%d:%d]" % (sT0, sT1))
        lab = a.newlabel("Lpc"); a.label(lab)
        a("s_sub_u32 s%d, s%d, %s-%s" % (sT0, sT0, lab, KNAME))
        a("s_subb_u32 s%d, s%d, 0" % (sT1, sT1))
        a("s_lshr_b32 s%d, s2, 3" % sT2); a("s_and_b32 s%d, s%d, 7" % (sT2, sT2))
        a("s_lshl_b32 s%d, s%d, 2" % (sT2, sT2)); a("s_add_u32 s%d, s%d, s%d" % (sT2, sT2, sW))
        a("s_lshl_b32 s%d, s%d, 10" % (sT2, sT2))
        a("v_lshl_add_u32 v%d, v%d, 4, s%d" % (vT, vL, sT2))
        a("v_min_u32 v%d, L_codeend-%s-16, v%d" % (vT, KNAME, vT))
        return self.vm("global_load_dwordx4 v[%d:%d], v%d, s[%d:%d]" % (dst, dst + 3, vT, sT0, sT1))
    def layernorm(self, hx, own):
        a = self.a; t = vT
        self.wait(hx)
        u = vX + 6
        for k in range(5):
            a("v_lshlrev_b32 v%d, 16, v%d" % (u + 2 * k, vX + k))
            a("v_and_b32 v%d, 0xffff0000, v%d" % (u + 2 * k + 1, vX + k))
        a("v_add_f32 v%d, v%d, v%d" % (t, u, u + 1))
        for k in range(2, 10): a("v_add_f32 v%d, v%d, v%d" % (t, t, u + k))
        self.allreduce_sgpr(t, "v_add_f32", sT0)
        a("v_mov_b32 v%d, 0x%08x" % (t + 1, INV640))
        a("v_mul_f32 v%d, s%d, v%d" % (t + 2, sT0, t + 1))
        a("v_sub_f32 v%d, v%d, v%d" % (u, u, t + 2))
        a("v_mul_f32 v%d, v%d, v%d" % (t, u, u))
        for k in range(1, 10):
            a("v_sub_f32 v%d, v%d, v%d" % (u + k, u + k, t + 2))
            a("v_fmac_f32 v%d, v%d, v%d" % (t, u + k, u + k))
        self.allreduce_sgpr(t, "v_add_f32", sT0)
        a("v_mul_f32 v%d, s%d, v%d" % (t + 3, sT0, t + 1))
        self.round_bf16(t + 2, t + 2)
        self.round_bf16(t + 3, t + 3)
        a("v_add_f32 v%d, 0x%08x, v%d" % (t + 3, EPS, t + 3))
        self.round_bf16(t + 3, t + 3)
        a("v_sqrt_f32 v%d, v%d" % (t + 3, t + 3)); a("s_nop 0")
        self.round_bf16(t + 3, t + 3)
        a("v_rcp_f32 v%d, v%d" % (t + 5, t + 3))
        for src, dst in own:
            a("v_lshlrev_b32 v%d, 16, v%d" % (t + 4, src))
            a("v_sub_f32 v%d, v%d, v%d" % (t + 4, t + 4, t + 2))
            self.round_bf16(t + 4, t + 4)
            a("v_mul_f32 v%d, v%d, v%d" % (t + 6, t + 4, t + 5))
            a("v_fma_f32 v%d, -v%d, v%d, v%d" % (t + 7, t + 6, t + 3, t + 4))
            a("v_fma_f32 v%d, v%d, v%d, v%d" % (dst, t + 7, t + 5, t + 6))

    def arrive(self, c):
        a = self.a
        self.lgkm0()
        a("v_mov_b32 v%d, %d" % (vT + 14, L_CNT + 4 * c)); a("v_mov_b32 v%d, 1" % (vT + 15))
        a("s_mov_b64 exec, 1")
        a("ds_add_u32 v%d, v%d" % (vT + 14, vT + 15))
        self.exec_all()
    def await_cnt(self, c, target):
        a = self.a
        lp = a.newlabel("Lcw"); ok = a.newlabel("Lcok")
        a("v_mov_b32 v%d, %d" % (vT + 14, L_CNT + 4 * c))
        a.label(lp)
        a("ds_read_b32 v%d, v%d" % (vT + 15, vT + 14))
        self.lgkm0()
        a("v_readfirstlane_b32 s%d, v%d" % (sT0, vT + 15))
        a("s_add_u32 s%d, s%d, 1" % (sSPIN, sSPIN))
        a("s_cmp_ge_u32 s%d, %d" % (sT0, target))
        a("s_cbranch_scc1 %s" % ok)
        a("s_cmp_gt_u32 s%d, 4000000" % sSPIN)
        a("s_cbranch_scc1 %s" % ok)
        a("s_sleep 1")
        a("s_branch %s" % lp)
        a.label(ok)

    def phaseq(self, hlast, A, PQ, PD):
        a = self.a; t = vT
        self.wait(hlast)
        self.stamp(3)
        for g in range(4):
            for tt in range(3):
                c = "0" if g == 0 else "v[%d:%d]" % (PD + 4 * tt, PD + 4 * tt + 3)
                B = PQ + 12 * g + 4 * tt
                a("v_mfma_f32_16x16x32_bf16 v[%d:%d], v[%d:%d], v[%d:%d], %s" % (PD + 4 * tt, PD + 4 * tt + 3, A[g], A[g] + 3, B, B + 3, c))
        self.tile_addr(t, 768, L_STG, sw=sWW)
        a("v_and_b32 v%d, 3, v%d" % (t + 2, vL)); a("v_mul_u32_u24 v%d, 1536, v%d" % (t + 2, t + 2))
        a("v_lshrrev_b32 v%d, 2, v%d" % (t + 6, vL)); a("v_min_u32 v%d, 11, v%d" % (t + 6, t + 6))
        a("s_mul_i32 s%d, s%d, 12" % (sT1, sWW)); a("v_add_u32 v%d, s%d, v%d" % (t + 6, sT1, t + 6))
        a("v_lshl_add_u32 v%d, v%d, 4, v%d" % (t + 3, t + 6, t + 2))
        a("s_mul_i32 s%d, s2, %d" % (sT1, QP_STRIDE))
        a("v_lshl_add_u32 v%d, v%d, 4, s%d" % (t + 5, t + 6, sT1))
        self.exec_valid()
        for tt in range(3): a("ds_write_b128 v%d, v[%d:%d] offset:%d" % (t, PD + 4 * tt, PD + 4 * tt + 3, 256 * tt))
        self.exec_all()
        self.arrive(0)
        self.epoch_finish()
        self.await_cnt(0, 4)
        self.stamp(4)
        R = PD
        a("ds_read_b128 v[%d:%d], v%d offset:%d" % (R, R + 3, t + 3, L_STG))
        a("ds_read_b128 v[%d:%d], v%d offset:%d" % (R + 4, R + 7, t + 3, L_STG + 768))
        self.lgkm0()
        self.pk_add(R, R, R + 4); self.pk_add(R + 2, R + 2, R + 6)
        a("s_nop 1")
        for m in ("quad_perm:[1,0,3,2]", "quad_perm:[2,3,0,1]"):
            for r in (R, R + 1, R + 2, R + 3): a("v_add_f32_dpp v%d, v%d, v%d %s%s" % (r, r, r, m, DPP_ALL))
        self.tagit([R, R + 1, R + 2, R + 3])
        self.exec_set(0x11111111, 0x00001111)
        self.vm("global_store_dwordx4 v%d, v[%d:%d], s[%d:%d] sc1" % (t + 5, R, R + 3, sWS, sWS + 1))
        self.exec_all()
        self.stamp(5)

    GQ = vVD
    GU = vVD + 8
    GA = vVD + 32
    def q_addrs(self, normal):
        a = self.a; t = vT; GA = self.GA
        a("s_mul_i32 s%d, s%d, %d" % (sT0, sH, 5 * QP_STRIDE)); a("s_mul_i32 s%d, s%d, 192" % (sT1, sWW))
        a("s_add_u32 s%d, s%d, s%d" % (sT0, sT0, sT1))
        a("v_min_u32 v%d, 4, v%d" % (t + 1, vL7))
        a("v_mul_u32_u24 v%d, %d, v%d" % (t + 1, QP_STRIDE, t + 1))
        a("v_lshl_add_u32 v%d, v%d, 4, v%d" % (t + 2, vL8, t + 1))
        a("v_add_u32 v%d, s%d, v%d" % (GA, sT0, t + 2))
        if normal:
            a("s_mul_i32 s%d, s%d, 171" % (sT0, sCG)); a("s_lshr_b32 s%d, s%d, 9" % (sT0, sT0))
            a("s_mul_i32 s%d, s%d, 3" % (sT1, sT0)); a("s_sub_u32 s%d, s%d, s%d" % (sT1, sCG, sT1))
            a("s_add_u32 s%d, s%d, 32" % (sT0, sT0)); a("s_mul_i32 s%d, s%d, %d" % (sT0, sT0, 5 * QP_STRIDE))
            a("s_lshl_b32 s%d, s%d, 8" % (sT1, sT1)); a("s_add_u32 s%d, s%d, s%d" % (sT0, sT0, sT1))
            a("s_lshl_b32 s%d, s%d, 6" % (sT1, sWW)); a("s_add_u32 s%d, s%d, s%d" % (sT0, sT0, sT1))
            a("v_lshrrev_b32 v%d, 2, v%d" % (t + 2, vL8))
            a("v_lshl_add_u32 v%d, v%d, 4, v%d" % (t + 2, t + 2, t + 1))
            a("v_add_u32 v%d, s%d, v%d" % (GA + 1, sT0, t + 2))
            a("v_add_u32 v%d, %d, v%d" % (GA + 2, 40 * QP_STRIDE, GA + 1))
    def q_loads(self, normal):
        a = self.a; GQ, GU, GA = self.GQ, self.GU, self.GA
        for k in range(8): a("v_mov_b32 v%d, s%d" % (GQ + k, sTAG))
        if normal:
            for k in range(16): a("v_mov_b32 v%d, s%d" % (GU + k, sTAG))
        self.exec_set(0x1f1f1f1f, 0x1f1f1f1f)
        a("global_load_dwordx4 v[%d:%d], v%d, s[%d:%d] sc1" % (GQ, GQ + 3, GA, sWS, sWS + 1))
        if normal:
            a("global_load_dwordx4 v[%d:%d], v%d, s[%d:%d] sc1" % (GU, GU + 3, GA + 1, sWS, sWS + 1))
            a("global_load_dwordx4 v[%d:%d], v%d, s[%d:%d] offset:32 sc1" % (GU + 4, GU + 7, GA + 1, sWS, sWS + 1))
            a("global_load_dwordx4 v[%d:%d], v%d, s[%d:%d] sc1" % (GU + 8, GU + 11, GA + 2, sWS, sWS + 1))
            a("global_load_dwordx4 v[%d:%d], v%d, s[%d:%d] offset:32 sc1" % (GU + 12, GU + 15, GA + 2, sWS, sWS + 1))
        a("s_mov_b32 exec_hi, 0")
        a("global_load_dwordx4 v[%d:%d], v%d, s[%d:%d] offset:128 sc1" % (GQ + 4, GQ + 7, GA, sWS, sWS + 1))
        self.exec_all()
    def q_check(self, normal):
        g = [self.GQ, self.GQ + 4]
        if normal: g += [self.GU, self.GU + 4, self.GU + 8, self.GU + 12]
        self.check_tags(g, vT)
    def q_reduce(self, normal, WD, DF):
        a = self.a; t = vT; GQ, GU = self.GQ, self.GU
        regs = [GQ + k for k in range(8)]
        self.untag(regs)
        self.reduce8(regs)
        for i in range(2):
            a("v_cvt_pk_bf16_f32 v%d, v%d, v%d" % (t + 2 * i, GQ + 4 * i, GQ + 4 * i + 1))
            a("v_cvt_pk_bf16_f32 v%d, v%d, v%d" % (t + 2 * i + 1, GQ + 4 * i + 2, GQ + 4 * i + 3))
        a("s_mul_i32 s%d, s%d, 96" % (sT0, sWW)); a("s_add_u32 s%d, s%d, %d" % (sT0, sT0, L_Q))
        a("v_lshl_add_u32 v%d, v%d, 3, s%d" % (t + 6, vL8, sT0))
        self.exec_set(0x01010101, 0x01010101)
        a("ds_write_b64 v%d, v[%d:%d]" % (t + 6, t, t + 1))
        a("s_mov_b32 exec_hi, 0")
        a("ds_write_b64 v%d, v[%d:%d] offset:64" % (t + 6, t + 2, t + 3))
        self.exec_all()
        self.arrive(1)
        self.stamp(7)
        if normal:
            a("v_and_b32 v%d, 3, v%d" % (t, vL8))
            for k in (1, 2, 3): a("v_cmp_eq_u32 s[%d:%d], %d, v%d" % (sM0 + 2 * k, sM0 + 2 * k + 1, k, t))
            a("s_nop 0")
            for q in range(4):
                for k in (1, 2, 3):
                    a("v_cndmask_b32 v%d, v%d, v%d, s[%d:%d]" % (GU + 4 * q, GU + 4 * q, GU + 4 * q + k, sM0 + 2 * k, sM0 + 2 * k + 1))
            sel = [GU, GU + 4, GU + 8, GU + 12]
            self.untag(sel)
            self.reduce8(sel)
            for g, u in ((GU, GU + 8), (GU + 4, GU + 12)):
                self.round_bf16(g, g); self.round_bf16(u, u)
                self.silu(g, g, t + 3)
                self.round_bf16(g, g)
                a("v_mul_f32 v%d, v%d, v%d" % (g, g, u))
            A0, A1 = t + 4, t + 8
            self.build_A(A0, GU); self.build_A(A1, GU + 4)
            a("s_nop 1")
            a("v_mfma_f32_16x16x32_bf16 v[%d:%d], v[%d:%d], v[%d:%d], 0" % (DF, DF + 3, A0, A0 + 3, WD, WD + 3))
            a("v_mfma_f32_16x16x32_bf16 v[%d:%d], v[%d:%d], v[%d:%d], v[%d:%d]" % (DF, DF + 3, A1, A1 + 3, WD + 4, WD + 7, DF, DF + 3))
            self.tile_addr(t + 12, 256, L_F, sw=sWW)
            a("s_nop 4")
            self.exec_valid()
            a("ds_write_b128 v%d, v[%d:%d]" % (t + 12, DF, DF + 3))
            self.exec_all()
            self.arrive(2)
    def f_publish(self):
        a = self.a; t = vT; R = vVD + 40
        self.await_cnt(2, 4)
        a("v_and_b32 v%d, 3, v%d" % (t, vL)); a("v_lshlrev_b32 v%d, 9, v%d" % (t, t))
        a("v_lshrrev_b32 v%d, 2, v%d" % (t + 1, vL))
        a("v_lshl_add_u32 v%d, v%d, 4, v%d" % (t, t + 1, t))
        a("ds_read_b128 v[%d:%d], v%d offset:%d" % (R, R + 3, t, L_F))
        a("ds_read_b128 v[%d:%d], v%d offset:%d" % (R + 4, R + 7, t, L_F + 256))
        a("s_mul_i32 s%d, s2, %d" % (sT3, OUT2_STRIDE)); a("s_add_u32 s%d, s%d, 384" % (sT3, sT3))
        a("v_lshlrev_b32 v%d, 4, v%d" % (t + 1, t + 1)); a("v_add_u32 v%d, s%d, v%d" % (t + 1, sT3, t + 1))
        self.lgkm0()
        self.pk_add(R, R, R + 4); self.pk_add(R + 2, R + 2, R + 6)
        a("s_nop 1")
        for m in ("quad_perm:[1,0,3,2]", "quad_perm:[2,3,0,1]"):
            for k in range(4): a("v_add_f32_dpp v%d, v%d, v%d %s%s" % (R + k, R + k, R + k, m, DPP_ALL))
        self.tagit([R, R + 1, R + 2, R + 3])
        self.exec_set(0x11111111, 0x11111111)
        self.vm("global_store_dwordx4 v%d, v[%d:%d], s[%d:%d] sc1" % (t + 1, R, R + 3, sOUT2, sOUT2 + 1), "w4")
        self.exec_all()
    def read_qf(self):
        a = self.a
        a("v_lshlrev_b32 v%d, 4, v%d" % (vT, vL7))
        for t in range(3): a("ds_read_b128 v[%d:%d], v%d offset:%d" % (vQF + 4 * t, vQF + 4 * t + 3, vT, L_Q + 128 * t))
        self.lgkm0()
    def qk_groups(self, groups):
        a = self.a
        for t in range(3):
            for v in range(4):
                for g in groups:
                    k = vKD + 12 * g + 4 * t + v
                    src2 = "0" if (t == 0 and v == 0) else "v%d" % (vSC + g)
                    a("v_dot2_f32_bf16 v%d, v%d, v%d, %s" % (vSC + g, k, vQF + 4 * t + v, src2))
    def softmax(self):
        a = self.a; t = vT
        a("s_nop 2")
        self.reduce8([vSC + g for g in range(8)])
        a("s_mov_b32 s%d, 0x%08x" % (sT0, SCALE))
        for g in range(0, 8, 2):
            a("v_cvt_pk_bf16_f32 v%d, v%d, v%d" % (t, vSC + g, vSC + g + 1))
            a("v_lshlrev_b32 v%d, 16, v%d" % (vSC + g, t))
            a("v_and_b32 v%d, 0xffff0000, v%d" % (vSC + g + 1, t))
            a("v_mul_f32 v%d, s%d, v%d" % (vSC + g, sT0, vSC + g))
            a("v_mul_f32 v%d, s%d, v%d" % (vSC + g + 1, sT0, vSC + g + 1))
            a("v_cvt_pk_bf16_f32 v%d, v%d, v%d" % (t, vSC + g, vSC + g + 1))
            a("v_lshlrev_b32 v%d, 16, v%d" % (vSC + g, t))
            a("v_and_b32 v%d, 0xffff0000, v%d" % (vSC + g + 1, t))
        a("v_max3_f32 v%d, v%d, v%d, v%d" % (t, vSC, vSC + 1, vSC + 2))
        a("v_max3_f32 v%d, v%d, v%d, v%d" % (t + 1, vSC + 3, vSC + 4, vSC + 5))
        a("v_max3_f32 v%d, v%d, v%d, v%d" % (t, t, vSC + 6, vSC + 7))
        a("v_max_f32 v%d, v%d, v%d" % (t, t, t + 1))
        self.slots_reduce_sgpr(t, "v_max_f32", sMW)
        a("s_mov_b32 s%d, 0x%08x" % (sT0, LOG2E))
        for g in range(8):
            a("v_subrev_f32 v%d, s%d, v%d" % (vSC + g, sMW, vSC + g))
            a("v_mul_f32 v%d, s%d, v%d" % (vSC + g, sT0, vSC + g))
            a("v_exp_f32 v%d, v%d" % (vSC + g, vSC + g))
        a("s_nop 0")
        a("v_add_f32 v%d, v%d, v%d" % (t, vSC, vSC + 1)); a("v_add_f32 v%d, v%d, v%d" % (t + 1, vSC + 2, vSC + 3))
        a("v_add_f32 v%d, v%d, v%d" % (t + 2, vSC + 4, vSC + 5)); a("v_add_f32 v%d, v%d, v%d" % (t + 3, vSC + 6, vSC + 7))
        a("v_add_f32 v%d, v%d, v%d" % (t, t, t + 1)); a("v_add_f32 v%d, v%d, v%d" % (t + 2, t + 2, t + 3))
        a("v_add_f32 v%d, v%d, v%d" % (t, t, t + 2))
        self.slots_reduce_sgpr(t, "v_add_f32", sLW)
        a("s_lshl_b32 s%d, s%d, 3" % (sT0, sW)); a("s_add_u32 s%d, s%d, %d" % (sT0, sT0, L_ML))
        a("v_mov_b32 v%d, s%d" % (t, sT0))
        a("v_mov_b32 v%d, s%d" % (t + 2, sMW)); a("v_mov_b32 v%d, s%d" % (t + 3, sLW))
        a("s_mov_b64 exec, 1")
        a("ds_write_b64 v%d, v[%d:%d]" % (t, t + 2, t + 3))
        self.exec_all()
        self.arrive(3)
    def build_PA(self):
        for g in range(8): self.build_A(vKD + 4 * g, vSC + g)
    def pv_group(self, g):
        DA = vKD + 32
        for t in range(3):
            B = vVD + 12 * g + 4 * t
            c = "0" if g == 0 else "v[%d:%d]" % (DA + 4 * t, DA + 4 * t + 3)
            self.a("v_mfma_f32_16x16x32_bf16 v[%d:%d], v[%d:%d], v[%d:%d], %s" % (DA + 4 * t, DA + 4 * t + 3, vKD + 4 * g, vKD + 4 * g + 3, B, B + 3, c))
    def wg_factor(self):
        a = self.a; t = vT
        self.await_cnt(3, 8)
        a("v_lshlrev_b32 v%d, 3, v%d" % (t, vL7))
        a("ds_read_b64 v[%d:%d], v%d offset:%d" % (t + 2, t + 3, t, L_ML))
        self.lgkm0()
        a("v_mov_b32 v%d, v%d" % (t + 4, t + 2))
        a("s_nop 1")
        self.reduce8([t + 4], "v_max_f32")
        a("s_mov_b32 s%d, 0x%08x" % (sT0, LOG2E))
        a("v_sub_f32 v%d, s%d, v%d" % (vFAC, sMW, t + 4))
        a("v_mul_f32 v%d, s%d, v%d" % (vFAC, sT0, vFAC))
        a("v_exp_f32 v%d, v%d" % (vFAC, vFAC))
        lab = a.newlabel("Lskip_ml")
        a("s_cmp_eq_u32 s%d, 0" % sW); a("s_cbranch_scc0 %s" % lab)
        a("v_sub_f32 v%d, v%d, v%d" % (t + 5, t + 2, t + 4))
        a("v_mul_f32 v%d, s%d, v%d" % (t + 5, sT0, t + 5))
        a("v_exp_f32 v%d, v%d" % (t + 5, t + 5)); a("s_nop 0")
        a("v_mul_f32 v%d, v%d, v%d" % (t + 5, t + 5, t + 3))
        a("s_nop 1")
        self.reduce8([t + 5])
        a("v_mov_b32 v%d, v%d\nv_mov_b32 v%d, v%d" % (t + 6, t + 4, t + 7, t + 5))
        self.tagit([t + 4, t + 5, t + 6, t + 7])
        a("s_mul_i32 s%d, s2, %d" % (sT1, OUT2_STRIDE)); a("v_mov_b32 v%d, s%d" % (t, sT1))
        a("s_mov_b64 exec, 1")
        self.vm("global_store_dwordx4 v%d, v[%d:%d], s[%d:%d] sc1" % (t, t + 4, t + 7, sOUT2, sOUT2 + 1), "w0")
        self.exec_all()
        a.label(lab)
    def pv_stage(self):
        a = self.a; t = vT; DA = vKD + 32
        self.tile_addr(t, 768, L_STG)
        a("s_nop 3")
        for k in range(12): a("v_mul_f32 v%d, v%d, v%d" % (DA + k, vFAC, DA + k))
        self.exec_valid()
        for tt in range(3): a("ds_write_b128 v%d, v[%d:%d] offset:%d" % (t, DA + 4 * tt, DA + 4 * tt + 3, 256 * tt))
        self.exec_all()
    def wo_loads(self):
        a = self.a; WO = vKD + 48
        a("v_mul_u32_u24 v%d, 5120, v%d" % (vX + 13, vL8))
        a("v_lshl_add_u32 v%d, v%d, 4, v%d" % (vX + 13, vL7, vX + 13))
        for r in range(4):
            self.vm("global_load_dwordx4 v[%d:%d], v%d, s[%d:%d] offset:%d %s" % (WO + 4 * r, WO + 4 * r + 3, vX + 13, sWO, sWO + 1, 1280 * r, self.nt))
    def wo_base(self):
        a = self.a
        a("s_lshl_b32 s%d, s%d, 3" % (sT1, sCG)); a("s_add_u32 s%d, s%d, s%d" % (sT1, sT1, sW))
        a("s_lshl_b32 s%d, s%d, 7" % (sT3, sRB))
        a("s_mul_i32 s%d, s%d, %d" % (sT2, sT1, 32 * 1280)); a("s_add_u32 s%d, s%d, s%d" % (sT2, sT2, sT3))
        a("s_add_u32 s%d, s%d, s%d" % (sWO, sWO, sT2)); a("s_addc_u32 s%d, s%d, 0" % (sWO + 1, sWO + 1))

    def tail_publish_o(self):
        a = self.a; t = vT
        a("v_min_u32 v%d, 5, v%d" % (t + 1, vL8))
        a("s_mul_i32 s%d, s%d, 96" % (sT0, sW))
        a("v_lshl_add_u32 v%d, v%d, 4, s%d" % (t + 1, t + 1, sT0))
        a("v_mul_u32_u24 v%d, 1536, v%d" % (t + 2, vL7))
        a("v_add_u32 v%d, v%d, v%d" % (t + 1, t + 1, t + 2))
        a("s_mul_i32 s%d, s%d, 6144" % (sT0, sH)); a("s_mul_i32 s%d, s%d, 768" % (sT1, sW))
        a("s_add_u32 s%d, s%d, s%d" % (sT0, sT0, sT1)); a("s_lshl_b32 s%d, s%d, 4" % (sT1, sJ))
        a("s_add_u32 s%d, s%d, s%d" % (sT0, sT0, sT1))
        a("v_lshl_add_u32 v%d, v%d, 7, s%d" % (t + 3, vL8, sT0))
        self.lgkm0()
        a("s_barrier")
        self.stamp(10)
        R = vX
        a("ds_read_b128 v[%d:%d], v%d offset:%d" % (R, R + 3, t + 1, L_STG))
        a("ds_read_b128 v[%d:%d], v%d offset:%d" % (R + 4, R + 7, t + 1, L_STG + 768))
        self.lgkm0()
        self.pk_add(R, R, R + 4); self.pk_add(R + 2, R + 2, R + 6)
        a("s_nop 1")
        self.reduce8([R, R + 1, R + 2, R + 3])
        self.tagit([R, R + 1, R + 2, R + 3])
        self.exec_set(0x01010101, 0x00000101)
        a("global_store_dwordx4 v%d, v[%d:%d], s[%d:%d] sc1" % (t + 3, R, R + 3, sO, sO + 1))
        self.exec_all()
    def hop1_wo(self):
        a = self.a; t = vT; R = vX + 4; M = vX + 8
        a("s_lshl_b32 s%d, s%d, 3" % (sT0, sCG)); a("s_add_u32 s%d, s%d, s%d" % (sT0, sT0, sW))
        a("s_mul_i32 s%d, s%d, 171" % (sT1, sT0)); a("s_lshr_b32 s%d, s%d, 10" % (sT1, sT1))
        a("s_mul_i32 s%d, s%d, 6" % (sT2, sT1)); a("s_sub_u32 s%d, s%d, s%d" % (sT2, sT0, sT2))
        if self.mapping == "lin":
            a("s_lshl_b32 s%d, s%d, 3" % (sT3, sT1)); a("v_add_u32 v%d, s%d, v%d" % (t + 7, sT3, vL7))
        else:
            a("s_lshr_b32 s%d, s%d, 2" % (sT3, sT1)); a("s_and_b32 s%d, s%d, 3" % (sT0, sT1))
            a("s_lshl_b32 s%d, s%d, 3" % (sT0, sT0)); a("s_add_u32 s%d, s%d, s%d" % (sT3, sT3, sT0))
            a("v_lshl_add_u32 v%d, v%d, 5, s%d" % (t + 7, vL7, sT3))
        a("v_mul_u32_u24 v%d, %d, v%d" % (t + 7, OUT2_STRIDE, t + 7))
        a("s_mul_i32 s%d, s%d, 6144" % (sT1, sT1)); a("s_lshl_b32 s%d, s%d, 10" % (sT2, sT2))
        a("s_add_u32 s%d, s%d, s%d" % (sT1, sT1, sT2))
        a("v_lshl_add_u32 v%d, v%d, 4, s%d" % (t + 8, vL, sT1))
        ldm = "global_load_dwordx4 v[%d:%d], v%d, s[%d:%d] sc1" % (M, M + 3, t + 7, sOUT2, sOUT2 + 1)
        ld = "global_load_dwordx4 v[%d:%d], v%d, s[%d:%d] sc1" % (R, R + 3, t + 8, sO, sO + 1)
        a(ldm); a(ld)
        self.tile_addr(t + 9, 256, L_S)
        a("s_waitcnt vmcnt(1)")
        def mlre(): a(ldm)
        self.poll_retry("ml", lambda: self.check_tags([M], t), mlre, sleep=1)
        self.untag([M, M + 1])
        a("v_mov_b32 v%d, v%d" % (t, M)); a("s_nop 1")
        self.reduce8([t], "v_max_f32")
        a("s_mov_b32 s%d, 0x%08x" % (sT0, LOG2E))
        a("v_sub_f32 v%d, v%d, v%d" % (t, M, t)); a("v_mul_f32 v%d, s%d, v%d" % (t, sT0, t))
        a("v_exp_f32 v%d, v%d" % (t, t)); a("s_nop 0")
        a("v_mul_f32 v%d, v%d, v%d" % (t + 1, t, M + 1)); a("s_nop 1")
        self.reduce8([t + 1])
        a("v_rcp_f32 v%d, v%d" % (t + 1, t + 1)); a("s_nop 0")
        a("v_mul_f32 v%d, v%d, v%d" % (t + 2, t, t + 1))
        a("s_waitcnt vmcnt(0)")
        self.poll_retry("o", lambda: self.check_tags([R], t), lambda: a(ld), sleep=self.o.get("osleep", 1))
        self.tstamp(11)
        self.untag([R, R + 1, R + 2, R + 3])
        for k in range(4): a("v_mul_f32 v%d, v%d, v%d" % (R + k, t + 2, R + k))
        self.reduce8([R, R + 1, R + 2, R + 3])
        A = vKD
        for r in range(4): self.build_A(A + 4 * r, R + r)
        WO = vKD + 48; DS = vKD + 44
        a("s_nop 1")
        for r in range(4):
            c = "0" if r == 0 else "v[%d:%d]" % (DS, DS + 3)
            a("v_mfma_f32_16x16x32_bf16 v[%d:%d], v[%d:%d], v[%d:%d], %s" % (DS, DS + 3, A + 4 * r, A + 4 * r + 3, WO + 4 * r, WO + 4 * r + 3, c))
        a("s_nop 7")
        self.exec_valid()
        a("ds_write_b128 v%d, v[%d:%d]" % (t + 9, DS, DS + 3))
        self.exec_all()
        self.lgkm0()
        a("s_barrier")
        lab = a.newlabel("Lskip_s")
        a("s_cmp_eq_u32 s%d, 0" % sW); a("s_cbranch_scc0 %s" % lab)
        a("s_mul_i32 s%d, s2, %d" % (sT3, OUT2_STRIDE)); a("s_add_u32 s%d, s%d, 128" % (sT3, sT3))
        self.reduce16_publish(L_S, sT3, vX)
        self.tstamp(12)
        a.label(lab)
    def reduce16_publish(self, lbase, goff, R):
        a = self.a; t = vT
        a("v_and_b32 v%d, 3, v%d" % (t, vL)); a("v_lshlrev_b32 v%d, 10, v%d" % (t, t))
        a("v_lshrrev_b32 v%d, 2, v%d" % (t + 1, vL))
        a("v_lshl_add_u32 v%d, v%d, 4, v%d" % (t, t + 1, t))
        for k in range(4): a("ds_read_b128 v[%d:%d], v%d offset:%d" % (R + 4 * k, R + 4 * k + 3, t, lbase + 256 * k))
        a("v_lshlrev_b32 v%d, 4, v%d" % (t + 1, t + 1)); a("v_add_u32 v%d, s%d, v%d" % (t + 1, goff, t + 1))
        self.lgkm0()
        for k in (0, 2):
            self.pk_add(R + k, R + k, R + 4 + k); self.pk_add(R + 8 + k, R + 8 + k, R + 12 + k)
        for k in (0, 2): self.pk_add(R + k, R + k, R + 8 + k)
        a("s_nop 0")
        for m in ("quad_perm:[1,0,3,2]", "quad_perm:[2,3,0,1]"):
            for k in range(4): a("v_add_f32_dpp v%d, v%d, v%d %s%s" % (R + k, R + k, R + k, m, DPP_ALL))
        self.tagit([R, R + 1, R + 2, R + 3])
        self.exec_set(0x11111111, 0x11111111)
        a("global_store_dwordx4 v%d, v[%d:%d], s[%d:%d] sc1" % (t + 1, R, R + 3, sOUT2, sOUT2 + 1))
        self.exec_all()
    def final(self):
        a = self.a; t = vT
        lab = a.newlabel("Lskip_fin")
        a("s_cmp_eq_u32 s%d, 0" % sW); a("s_cbranch_scc0 %s" % lab)
        a("s_cmp_lt_u32 s2, 250"); a("s_cbranch_scc0 %s" % lab)
        a("s_sub_u32 s%d, s2, 240" % sT3)
        a("v_lshrrev_b32 v%d, 4, v%d" % (t, vL))
        a("v_mul_u32_u24 v%d, %d, v%d" % (t, 10 * OUT2_STRIDE, t))
        a("v_and_b32 v%d, 15, v%d" % (t + 1, vL))
        a("v_lshl_add_u32 v%d, v%d, 4, v%d" % (t, t + 1, t))
        a("s_mul_i32 s%d, s%d, %d" % (sT0, sT3, OUT2_STRIDE))
        a("v_add_u32 v%d, s%d, v%d" % (t, sT0, t))
        AD = vKD
        for i in range(6): a("v_add_u32 v%d, %d, v%d" % (AD + i, i * 40 * OUT2_STRIDE, t))
        RF = vKD + 8; RS = vKD + 32
        a("s_lshl_b32 s%d, s%d, 7" % (sT0, sT3))
        a("v_lshl_add_u32 v%d, v%d, 3, s%d" % (t + 2, t + 1, sT0))
        XR = vKD + 56
        a("global_load_dwordx2 v[%d:%d], v%d, s[%d:%d]" % (XR, XR + 1, t + 2, sX, sX + 1))
        def loads(R, off):
            for i in range(6):
                a("global_load_dwordx4 v[%d:%d], v%d, s[%d:%d] offset:%d sc1" % (R + 4 * i, R + 4 * i + 3, AD + i, sOUT2, sOUT2 + 1, off))
        def check(R): self.check_tags([R + 4 * i for i in range(6)], t + 3)
        def total(R):
            self.untag([R + k for k in range(24)])
            for i in (1, 3, 5):
                for k in (0, 2): self.pk_add(R + 4 * (i - 1) + k, R + 4 * (i - 1) + k, R + 4 * i + k)
            for i in (2, 4):
                for k in (0, 2): self.pk_add(R + k, R + k, R + 4 * i + k)
            for sw in ("v_permlane16_swap_b32", "v_permlane32_swap_b32"):
                for k in range(4): a("v_mov_b32 v%d, v%d" % (R + 4 + k, R + k))
                a("s_nop 1")
                for k in range(4): a("%s v%d, v%d" % (sw, R + k, R + 4 + k))
                a("s_nop 1")
                for k in range(4): a("v_add_f32 v%d, v%d, v%d" % (R + k, R + k, R + 4 + k))
        loads(RF, 384)
        a("s_waitcnt vmcnt(0)")
        self.poll_retry("f", lambda: check(RF), lambda: loads(RF, 384))
        loads(RS, 128)
        total(RF)
        for k in range(4):
            self.round_bf16(RF + k, RF + k); self.silu(RF + k, RF + k, t + 5); self.round_bf16(RF + k, RF + k)
        a("v_lshlrev_b32 v%d, 16, v%d" % (t + 6, XR)); a("v_and_b32 v%d, 0xffff0000, v%d" % (t + 7, XR))
        a("v_lshlrev_b32 v%d, 16, v%d" % (t + 8, XR + 1)); a("v_and_b32 v%d, 0xffff0000, v%d" % (t + 9, XR + 1))
        a("s_waitcnt vmcnt(0)")
        self.poll_retry("s", lambda: check(RS), lambda: loads(RS, 128), sleep=self.o.get("ssleep", 1))
        self.tstamp(13)
        total(RS)
        for k in range(4):
            self.round_bf16(RS + k, RS + k)
            a("v_mul_f32 v%d, v%d, v%d" % (RS + k, RS + k, RF + k))
            self.round_bf16(RS + k, RS + k)
            a("v_add_f32 v%d, v%d, v%d" % (RS + k, RS + k, t + 6 + k))
        a("v_cvt_pk_bf16_f32 v%d, v%d, v%d" % (t + 10, RS, RS + 1))
        a("v_cvt_pk_bf16_f32 v%d, v%d, v%d" % (t + 11, RS + 2, RS + 3))
        a("s_mov_b64 exec, 0xffff")
        a("global_store_dwordx2 v%d, v[%d:%d], s[%d:%d]" % (t + 2, t + 10, t + 11, sOUT, sOUT + 1))
        if self.o.get("dbgtime", 0):
            a("s_memrealtime s[98:99]")
            a("s_waitcnt lgkmcnt(0)")
            a("s_sub_u32 s98, s98, s96")
            a("s_sub_u32 s99, s2, 240"); a("s_lshl_b32 s99, s99, 2")
            a("s_mov_b64 exec, 1")
            a("v_mov_b32 v%d, s99" % (t + 12)); a("v_mov_b32 v%d, s98" % (t + 13))
            a("global_store_dword v%d, v%d, s[%d:%d]" % (t + 12, t + 13, sDBG, sDBG + 1))
        lab2 = a.newlabel("Lskip_ep")
        a("s_cmp_eq_u32 s2, 240"); a("s_cbranch_scc0 %s" % lab2)
        a("s_mov_b64 exec, 1")
        a("v_mov_b32 v%d, 0x%x" % (t + 12, WS_EPOCH)); a("v_mov_b32 v%d, s%d" % (t + 13, sE))
        a("global_store_dword v%d, v%d, s[%d:%d]" % (t + 12, t + 13, sWS, sWS + 1))
        a.label(lab2)
        self.exec_all()
        self.tstamp(14)
        a.label(lab)
    def write_stamps(self):
        if not self.stamps: return
        a = self.a
        lab = a.newlabel("Lskip_st")
        a("s_cmp_eq_u32 s%d, %d" % (sW, self.o.get("stamp_wave", 0))); a("s_cbranch_scc0 %s" % lab)
        self.stamp(15)
        self.lgkm0()
        a("s_add_u32 s%d, s%d, 0x%x" % (sWS, sWS, STAMP_OFF)); a("s_addc_u32 s%d, s%d, 0" % (sWS + 1, sWS + 1))
        a("s_lshl_b32 s%d, s2, 7" % sT0); a("v_mov_b32 v%d, s%d" % (vT, sT0))
        a("s_mov_b64 exec, 1")
        for k in range(0, 16, 2):
            for q in range(4): a("v_mov_b32 v%d, s%d" % (vT + 4 + q, sSTAMP + 2 * k + q))
            a("global_store_dwordx4 v%d, v[%d:%d], s[%d:%d] offset:%d" % (vT, vT + 4, vT + 7, sWS, sWS + 1, 8 * k))
            a("s_nop 1")
        a.label(lab)
    def attention(self, hK, hV, after_issue=None):
        a = self.a
        self.await_cnt(1, 4)
        self.read_qf()
        self.wait(hK[11]); self.qk_groups([0, 1, 2, 3])
        self.wait(hK[23]); self.qk_groups([4, 5, 6, 7])
        self.softmax()
        self.stamp(8)
        self.build_PA()
        for g in range(7):
            self.wait(hV[3 * g + 2]); self.pv_group(g)

    def streamer(self, normal):
        a = self.a; o = self.o
        self.ops = []
        a("s_setprio %d" % o.get("prio_s", 2))
        DS = o.get("ds", 6)
        hs = [self.kv_load("K", 0), self.kv_load("K", 1)]
        self.b0()
        self.epoch_load()
        if o.get("pf", 1): self.code_prefetch(vX)
        items = [("K", i) for i in range(2, 24)] + [("V", i) for i in range(24)]
        for k, (m, i) in enumerate(items):
            n = len(hs)
            if DS and n - DS >= 0: self.wait(hs[n - DS])
            hs.append(self.kv_load(m, i))
            if n == 4: self.consts()
        hK = hs[:24]; hV = hs[24:]
        self.stamp(1)
        if o.get("so", 0):
            if normal:
                self.wo_base(); self.wo_loads()
            a("s_waitcnt vmcnt(0)")
            self.stamp(9)
            return
        self.lgkm0()
        self.epoch_finish()
        if normal: self.wo_base()
        self.attention(hK, hV)
        self.wait(hV[23]); self.pv_group(7)
        self.stamp(9)
        if normal:
            a("s_setprio %d" % o.get("prio_wo", 0))
            self.wo_loads()
        self.wg_factor()
        self.pv_stage()

    def b0(self):
        a = self.a
        a("v_mov_b32 v%d, %d\nv_mov_b32 v%d, 0\nv_mov_b32 v%d, 0\nv_mov_b32 v%d, 0\nv_mov_b32 v%d, 0" % (vT + 8, L_CNT, vT + 10, vT + 11, vT + 12, vT + 13))
        a("s_mov_b64 exec, 1")
        a("ds_write_b128 v%d, v[%d:%d]" % (vT + 8, vT + 10, vT + 13))
        self.exec_all()
        a("s_waitcnt lgkmcnt(0)")
        a("s_barrier")

    def worker(self, normal):
        a = self.a; o = self.o; t = vT
        self.ops = []
        a("s_setprio 3")
        a("s_sub_u32 s%d, s%d, 4" % (sWW, sW))
        PQ = vVD; PD = vVD + 48; WD = vVD + 88; DF = vVD + 84
        NE = o.get("ne", 0) if normal else o.get("ne_l", 8)
        hK = []
        nt = self.nt
        def gl(reg, va, sb, off=0): return self.vm("global_load_dwordx4 v[%d:%d], v%d, s[%d:%d] offset:%d %s" % (reg, reg + 3, va, sb, sb + 1, off, nt))
        if normal:
            a("s_mul_i32 s%d, s2, 205" % sCT); a("s_lshr_b32 s%d, s%d, 10" % (sCT, sCT))
            a("s_mul_i32 s%d, s%d, 5" % (sRB5, sCT)); a("s_sub_u32 s%d, s2, s%d" % (sRB5, sRB5))
            a("s_cmp_lt_u32 s%d, 40" % sCT)
            a("s_cselect_b32 s%d, s%d, s%d" % (sPB, sWG, sWU)); a("s_cselect_b32 s%d, s%d, s%d" % (sPB + 1, sWG + 1, sWU + 1))
            a("s_cselect_b32 s%d, 32, 40" % sT1)
            a("s_cmp_lt_u32 s%d, 32" % sCT)
            a("s_cselect_b32 s%d, s%d, s%d" % (sPB, sWQ, sPB)); a("s_cselect_b32 s%d, s%d, s%d" % (sPB + 1, sWQ + 1, sPB + 1))
            a("s_cselect_b32 s%d, 0, s%d" % (sT1, sT1))
            a("s_cselect_b32 s%d, 2, 0" % sSTR); a("s_lshl_b32 s%d, 3072, s%d" % (sSTR, sSTR))
            a("s_sub_u32 s%d, s%d, s%d" % (sT1, sCT, sT1)); a("s_mul_i32 s%d, s%d, 384" % (sT1, sT1))
            a("s_lshl_b32 s%d, s%d, 2" % (sT0, sRB5)); a("s_add_u32 s%d, s%d, s%d" % (sT0, sT0, sWW))
            a("s_lshl_b32 s%d, s%d, 5" % (sT0, sT0))
            a("s_mul_i32 s%d, s%d, s%d" % (sT2, sT0, sSTR)); a("s_add_u32 s%d, s%d, s%d" % (sT1, sT1, sT2))
            a("s_add_u32 s%d, s%d, s%d" % (sPB, sPB, sT1)); a("s_addc_u32 s%d, s%d, 0" % (sPB + 1, sPB + 1))
            a("v_mul_u32_u24 v%d, s%d, v%d" % (vX + 8, sSTR, vL8))
            a("v_lshl_add_u32 v%d, v%d, 4, v%d" % (vX + 8, vL7, vX + 8))
            a("s_lshl_b32 s%d, s%d, 3" % (sSTR, sSTR))
            a("v_lshlrev_b32 v%d, 2, v%d" % (t, vL))
            for k in range(5): hx = self.vm("global_load_dword v%d, v%d, s[%d:%d] offset:%d" % (vX + k, t, sX, sX + 1, 256 * k))
            a("v_add_u32 v%d, s%d, v%d" % (t + 1, sT0, vL8)); a("v_lshlrev_b32 v%d, 1, v%d" % (t + 1, t + 1))
            for g in range(4):
                hx = self.vm("global_load_ushort v%d, v%d, s[%d:%d] offset:%d" % (vQF + g, t + 1, sX, sX + 1, 16 * g))
            hlast = None
            for g in range(4):
                if g: a("v_add_u32 v%d, s%d, v%d" % (vX + 8, sSTR, vX + 8))
                for tt in range(3): hlast = gl(PQ + 12 * g + 4 * tt, vX + 8, sPB, 128 * tt)
                if g == 0:
                    self.b0()
                    self.epoch_load()
            a("s_lshl_b32 s%d, s%d, 2" % (sT1, sCG)); a("s_add_u32 s%d, s%d, s%d" % (sT1, sT1, sWW))
            a("s_mul_i32 s%d, s%d, %d" % (sT2, sT1, 16 * 1280)); a("s_lshl_b32 s%d, s%d, 7" % (sT3, sRB))
            a("s_add_u32 s%d, s%d, s%d" % (sT2, sT2, sT3))
            a("s_add_u32 s%d, s%d, s%d" % (sWD, sWD, sT2)); a("s_addc_u32 s%d, s%d, 0" % (sWD + 1, sWD + 1))
            self.stamp(1)
            if o.get("so", 0):
                a("v_mul_u32_u24 v%d, 1280, v%d" % (vX + 10, vL8))
                a("v_lshl_add_u32 v%d, v%d, 4, v%d" % (vX + 10, vL7, vX + 10))
                gl(WD, vX + 10, sWD)
                a("v_add_u32 v%d, %d, v%d" % (vX + 10, 8 * 1280, vX + 10))
                gl(WD + 4, vX + 10, sWD)
                self.wo_base()
                if o.get("so", 0) == 2:
                    a("s_waitcnt vmcnt(0)")
                    for _ in range(7): a("s_sleep 16")
                a("s_setprio %d" % o.get("prio_w", 1))
                for i in range(24): self.kv_load("K", i)
                for i in range(24): self.kv_load("V", i)
                self.stamp(8)
                self.wo_loads()
                a("s_waitcnt vmcnt(0)")
                self.stamp(9)
                return
            self.consts()
            A = [vSC, vSC + 4, vQF + 4, vQF + 8]
            self.layernorm(hx, [(vQF + g, vKD + 80 + g) for g in range(4)])
            for g in range(4): self.build_A(A[g], vKD + 80 + g)
            self.stamp(2)
            self.phaseq(hlast, A, PQ, PD)
            a("v_mul_u32_u24 v%d, 1280, v%d" % (vX + 10, vL8))
            a("v_lshl_add_u32 v%d, v%d, 4, v%d" % (vX + 10, vL7, vX + 10))
            gl(WD, vX + 10, sWD)
            a("v_add_u32 v%d, %d, v%d" % (vX + 10, 8 * 1280, vX + 10))
            gl(WD + 4, vX + 10, sWD)
            self.wo_base()
            hK += [self.kv_load("K", i) for i in range(NE)]
        else:
            hK += [self.kv_load("K", i) for i in range(2)]
            self.b0()
            self.epoch_load()
            hK += [self.kv_load("K", i) for i in range(2, NE)]
            self.stamp(1)
            if o.get("so", 0):
                for i in range(NE, 24): self.kv_load("K", i)
                for i in range(24): self.kv_load("V", i)
                a("s_waitcnt vmcnt(0)")
                self.stamp(9)
                return
            self.consts()
            self.lgkm0()
            self.epoch_finish()
        self.q_addrs(normal)
        for _ in range(o.get("qdelay", 0)): a("s_sleep 16")
        self.q_loads(normal)
        a("s_waitcnt vmcnt(0)")
        self.poll_retry("q", lambda: self.q_check(normal), lambda: self.q_loads(normal), sleep=o.get("qsleep", 2))
        self.stamp(6)
        self.ops = []
        self.q_reduce(normal, WD, DF)
        if normal:
            lab = a.newlabel("Lskip_f")
            a("s_cmp_eq_u32 s%d, 4" % sW); a("s_cbranch_scc0 %s" % lab)
            self.f_publish()
            a.label(lab)
        a("s_setprio %d" % o.get("prio_w", 1))
        KQ = o.get("kq", 10)
        self.dstamp(2)
        hK = [-1] * NE + [self.kv_load("K", i) for i in range(NE, 24)]
        self.dstamp(11)
        hV = [self.kv_load("V", i) for i in range(KQ)]
        self.dstamp(12)
        def W(h):
            if h >= 0: self.wait(h)
        self.await_cnt(1, 4)
        self.read_qf()
        W(hK[11]); self.dstamp(13); self.qk_groups([0, 1, 2, 3])
        hV += [self.kv_load("V", i) for i in range(KQ, KQ + 2)]
        W(hK[23]); self.dstamp(14); self.qk_groups([4, 5, 6, 7])
        hV += [self.kv_load("V", i) for i in range(KQ + 2, KQ + 4)]
        self.softmax()
        self.stamp(8)
        hV += [self.kv_load("V", i) for i in range(KQ + 4, 24)]
        self.dstamp(3)
        if normal: self.wo_loads()
        self.dstamp(4)
        self.build_PA()
        self.wg_factor()
        for g in range(8):
            self.wait(hV[3 * g + 2]); self.pv_group(g)
        self.stamp(9)
        self.pv_stage()

    def run_path(self, normal):
        a = self.a
        tag = "n" if normal else "l"
        a("s_cmp_ge_u32 s%d, 4" % sW)
        a("s_cbranch_scc1 L_worker_%s" % tag)
        self.streamer(normal)
        a("s_branch L_tail_%s" % tag)
        a.label("L_worker_%s" % tag)
        self.worker(normal)
        a.label("L_tail_%s" % tag)
        if self.o.get("so", 0):
            a("s_barrier")
            self.stamp(10)
            self.write_stamps()
            return
        self.tail_publish_o()
        if normal: self.hop1_wo()
        else: self.final()
        self.write_stamps()

    def generate(self):
        a = self.a
        self.prologue()
        if self.stamps:
            for k in range(1, 16): a("s_mov_b64 s[%d:%d], 0" % (sSTAMP + 2 * k, sSTAMP + 2 * k + 1))
        a("s_cmp_ge_u32 s2, 240")
        a("s_cbranch_scc1 L_light")
        self.run_path(True)
        a("s_endpgm")
        a.label("L_light")
        self.run_path(False)
        a.label("L_end")
        txt = wrap(a.text(), 256, 512, LDS_BYTES, vgpr=256, sgpr=100)
        return txt.replace("    s_endpgm\n.section", "    s_endpgm\nL_codeend:\n.section")

if __name__ == "__main__":
    import argparse
    ap = argparse.ArgumentParser()
    ap.add_argument("-o", default="k.s"); ap.add_argument("--D", type=int, default=3)
    ap.add_argument("--stamps", action="store_true"); ap.add_argument("--nt", default="nt")
    ap.add_argument("--mapping", default="lin"); ap.add_argument("--normp", action="store_true")
    ap.add_argument("--opt", action="append", default=[])
    args = ap.parse_args()
    opts = {}
    for kv in args.opt:
        k, v = kv.split("="); opts[k] = int(v)
    open(args.o, "w").write(Gen(args.D, args.stamps, args.nt, args.mapping, args.normp, opts).generate())
```

```python
import struct, sys
from asmlib import *

def f2u(x): return struct.unpack("<I", struct.pack("<f", x))[0]
SCALE = f2u(192 ** -0.5); LOG2E = f2u(1.4426950408889634); INV640 = f2u(1.0 / 640.0); EPS = f2u(1e-5)

WS_QP = 0x00000; QP_STRIDE = 768
WS_O = 0x80000
WS_OUT2 = 0xB0000; OUT2_STRIDE = 640
WS_EPOCH = 0xE0000
STAMP_OFF = 128 << 20
L_STG = 0
L_Q = 24576
L_F = 25088
L_S = 29184
L_CNT = 33280
L_ML = 33312
LDS_BYTES = 33408
sX, sK, sV, sWQ, sWO, sBX, sWG, sWU, sWD, sOUT, sDBG, sWS = 4, 6, 8, 10, 12, 14, 16, 18, 20, 22, 24, 26
sW = 3
sCG, sRB, sH, sJ = 28, 29, 30, 31
sT0, sT1, sT2, sT3 = 32, 33, 34, 35
sM0 = 36
sSPIN = 44
sMW, sLW, sMG, sLG = 45, 46, 47, 48
sO = 54; sOUT2 = 56
sE, sTAG4 = 58, 59
sWW = 49
sPB = 50
sSTR = 52
sCT, sRB5 = 53, 14
sN = 15
sSTAMP = 60
sSELA, sSELB, sSELC, sTAG = 92, 93, 94, 95
vL, vKO, vL8, vL7, vLDSW, vFF, vFAC = 1, 2, 3, 4, 5, 6, 7
vM = 8; vQF = 12; vSC = 24; vT = 32; vKD = 48; vVD = 144; vX = 240

DPP_ALL = " row_mask:0xf bank_mask:0xf"

class Gen:
    def __init__(self, D=3, stamps=False, nt="nt", mapping="lin", norm_p=False, opts=None):
        self.a = Asm(); self.D = D; self.stamps = stamps; self.nt = nt
        self.mapping = mapping; self.norm_p = norm_p; self.o = opts or {}
        self.ops = []
    def vm(self, text, role=None):
        self.a(text); self.ops.append(role); return len(self.ops) - 1
    def wait(self, h, role=None):
        n = sum(1 for r in self.ops[h + 1:] if r is None or (role is not None and r == role))
        assert n <= 63
        self.a("s_waitcnt vmcnt(%d)" % n)
    def stamp(self, k):
        if self.stamps: self.a("s_memrealtime s[%d:%d]" % (sSTAMP + 2 * k, sSTAMP + 2 * k + 1))
    def dstamp(self, k):
        if self.o.get("diag", 0): self.stamp(k)
    def xstamp(self, k):
        if self.o.get("tdiag", 0): self.stamp(k)
    def tstamp(self, k):
        if not self.o.get("diag", 0): self.stamp(k)
    def lgkm0(self): self.a("s_waitcnt lgkmcnt(0)")
    def exec_set(self, lo, hi): self.a("s_mov_b32 exec_lo, 0x%08x\ns_mov_b32 exec_hi, 0x%08x" % (lo, hi))
    def exec_valid(self): self.exec_set(0x00ff00ff, 0xff00ff00)
    def exec_all(self): self.a("s_mov_b64 exec, -1")
    def allreduce_sgpr(self, v, op, sdst):
        a = self.a
        for m in ("quad_perm:[1,0,3,2]" + DPP_ALL, "quad_perm:[2,3,0,1]" + DPP_ALL, "row_half_mirror" + DPP_ALL, "row_mirror" + DPP_ALL,
                  "row_bcast:15 row_mask:0xa bank_mask:0xf", "row_bcast:31 row_mask:0xc bank_mask:0xf"):
            a("s_nop 1"); a("%s_dpp v%d, v%d, v%d %s" % (op, v, v, v, m))
        a("s_nop 1"); a("v_readlane_b32 s%d, v%d, 63" % (sdst, v)); a("s_nop 1")
    def slots_reduce_sgpr(self, v, op, sdst):
        a = self.a
        for m in ("row_ror:8" + DPP_ALL, "row_bcast:15 row_mask:0xa bank_mask:0xf", "row_bcast:31 row_mask:0xc bank_mask:0xf"):
            a("s_nop 1"); a("%s_dpp v%d, v%d, v%d %s" % (op, v, v, v, m))
        a("s_nop 1"); a("v_readlane_b32 s%d, v%d, 63" % (sdst, v)); a("s_nop 1")
    def reduce8(self, regs, op="v_add_f32"):
        a = self.a
        for m in ("quad_perm:[1,0,3,2]", "quad_perm:[2,3,0,1]", "row_half_mirror"):
            if len(regs) < 3: a("s_nop %d" % (2 - len(regs)))
            for r in regs: a("%s_dpp v%d, v%d, v%d %s%s" % (op, r, r, r, m, DPP_ALL))
    def round_bf16(self, dst, src):
        self.a("v_cvt_pk_bf16_f32 v%d, v%d, v%d" % (dst, src, src))
        self.a("v_and_b32 v%d, 0xffff0000, v%d" % (dst, dst))
    def build_A(self, d, src):
        a = self.a
        a("v_cvt_pk_bf16_f32 v%d, v%d, v%d" % (d + 3, src, src))
        for v in range(3): a("v_and_b32 v%d, v%d, v%d" % (d + v, d + 3, vM + v))
        a("v_and_b32 v%d, v%d, v%d" % (d + 3, d + 3, vM + 3))
    def silu(self, dst, src, t):
        a = self.a
        a("v_mul_f32 v%d, 0x%08x, v%d" % (t, LOG2E ^ 0x80000000, src))
        a("v_exp_f32 v%d, v%d" % (t, t)); a("s_nop 0")
        a("v_add_f32 v%d, 1.0, v%d" % (t, t))
        a("v_rcp_f32 v%d, v%d" % (t, t)); a("s_nop 0")
        a("v_mul_f32 v%d, v%d, v%d" % (dst, src, t))
    def pk_add(self, d, x, y):
        self.a("v_pk_add_f32 v[%d:%d], v[%d:%d], v[%d:%d]" % (d, d + 1, x, x + 1, y, y + 1))
    def tagit(self, regs):
        for r in regs: self.a("v_bfi_b32 v%d, v%d, s%d, v%d" % (r, vFF, sTAG, r))
    def untag(self, regs):
        for r in regs: self.a("v_and_b32 v%d, 0xffffff00, v%d" % (r, r))
    def gather_tags(self, dst, r):
        a = self.a
        a("v_perm_b32 v%d, v%d, v%d, s%d" % (dst, r + 1, r, sSELA))
        a("v_perm_b32 v%d, v%d, v%d, s%d" % (dst, r + 2, dst, sSELB))
        a("v_perm_b32 v%d, v%d, v%d, s%d" % (dst, r + 3, dst, sSELC))
    def check_tags(self, granules, t):
        a = self.a
        self.gather_tags(t, granules[0])
        if len(granules) == 1:
            a("v_cmp_ne_u32 vcc, s%d, v%d" % (sTAG4, t)); return
        a("v_xor_b32 v%d, s%d, v%d" % (t, sTAG4, t))
        for r in granules[1:]:
            self.gather_tags(t + 1, r)
            a("v_xor_b32 v%d, s%d, v%d" % (t + 1, sTAG4, t + 1))
            a("v_or_b32 v%d, v%d, v%d" % (t, t, t + 1))
        a("v_cmp_ne_u32 vcc, 0, v%d" % t)
    def poll_retry(self, name, check_fn, reload_fn, sleep=2, masked=False):
        a = self.a
        ok = a.newlabel("Lok_" + name); re_ = a.newlabel("Lre_" + name)
        check_fn()
        a("s_cbranch_vccz %s" % ok)
        a.label(re_)
        a("s_add_u32 s%d, s%d, 1" % (sSPIN, sSPIN))
        a("s_cmp_gt_u32 s%d, 200000" % sSPIN)
        a("s_cbranch_scc1 %s" % ok)
        if sleep: a("s_sleep %d" % sleep)
        if masked: a("s_mov_b64 exec, vcc")
        reload_fn()
        if masked: self.exec_all()
        a("s_waitcnt vmcnt(0)")
        check_fn()
        a("s_cbranch_vccnz %s" % re_)
        a.label(ok)
    def poll_pipe(self, name, check_fn, load_fn, half_rtt=8, nload=1):
        a = self.a
        ok = a.newlabel("Lok_" + name); lp = a.newlabel("Llp_" + name)
        check_fn()
        a("s_cbranch_vccz %s" % ok)
        a("s_mov_b64 exec, vcc"); load_fn(); self.exec_all()
        a("s_sleep %d" % half_rtt)
        a.label(lp)
        a("s_add_u32 s%d, s%d, 1" % (sSPIN, sSPIN))
        a("s_cmp_gt_u32 s%d, 400000" % sSPIN)
        a("s_cbranch_scc1 %s" % ok)
        a("s_mov_b64 exec, vcc"); load_fn(); self.exec_all()
        a("s_waitcnt vmcnt(%d)" % nload)
        check_fn()
        a("s_cbranch_vccnz %s" % lp)
        a.label(ok)
    def prologue(self):
        a = self.a
        a("s_load_dwordx16 s[4:19], s[0:1], 0")
        a("s_load_dwordx8 s[20:27], s[0:1], 64")
        self.stamp(0)
        if self.o.get("dbgtime", 0): a("s_memrealtime s[96:97]")
        a("s_cmp_ge_u32 s2, 256")
        a("s_cbranch_scc1 L_end")
        a("v_lshrrev_b32 v%d, 6, v0" % vT)
        a("v_and_b32 v%d, 63, v0" % vL)
        a("v_readfirstlane_b32 s%d, v%d" % (sW, vT))
        a("v_lshrrev_b32 v%d, 3, v%d" % (vL8, vL))
        a("v_and_b32 v%d, 7, v%d" % (vL7, vL))
        a("v_mul_u32_u24 v%d, 384, v%d" % (vKO, vL8))
        a("v_lshl_add_u32 v%d, v%d, 4, v%d" % (vKO, vL7, vKO))
        if self.mapping == "lin":
            a("s_mov_b32 s%d, s2" % sT3)
        else:
            a("s_and_b32 s%d, s2, 7" % sT0); a("s_lshr_b32 s%d, s2, 3" % sT1)
            a("s_and_b32 s%d, s%d, 3" % (sT2, sT1)); a("s_lshl_b32 s%d, s%d, 2" % (sT0, sT0))
            a("s_add_u32 s%d, s%d, s%d" % (sT0, sT0, sT2)); a("s_lshr_b32 s%d, s%d, 2" % (sT1, sT1))
            a("s_lshl_b32 s%d, s%d, 3" % (sT0, sT0)); a("s_add_u32 s%d, s%d, s%d" % (sT3, sT0, sT1))
        a("s_lshr_b32 s%d, s%d, 3" % (sH, sT3))
        a("s_and_b32 s%d, s%d, 7" % (sJ, sT3))
        if self.o.get("kvint", 0) == 1:
            a("s_lshl_b32 s%d, s%d, 3" % (sT0, sJ)); a("s_add_u32 s%d, s%d, s%d" % (sT0, sT0, sW))
            a("s_mul_i32 s%d, s%d, 3072" % (sT0, sT0))
            a("s_mul_i32 s%d, s%d, 1572864" % (sT1, sH)); a("s_add_u32 s%d, s%d, s%d" % (sT0, sT0, sT1))
        elif self.o.get("kvint", 0) == 2:
            a("s_mul_i32 s%d, s%d, 196608" % (sT0, sT3))
            a("s_mul_i32 s%d, s%d, 3072" % (sT1, sW)); a("s_add_u32 s%d, s%d, s%d" % (sT0, sT0, sT1))
        else:
            a("s_lshl_b32 s%d, s%d, 3" % (sT0, sT3))
            a("s_add_u32 s%d, s%d, s%d" % (sT0, sT0, sW))
            a("s_mul_i32 s%d, s%d, 24576" % (sT0, sT0))
        if self.o.get("lightodd", 1):
            a("s_sub_u32 s%d, s2, 224" % sT1)
            a("s_lshr_b32 s%d, s%d, 1" % (sT2, sT1))
            a("s_and_b32 s%d, s%d, 1" % (sT1, sT1)); a("s_lshl_b32 s%d, s%d, 4" % (sT1, sT1))
            a("s_add_u32 s%d, s%d, s%d" % (sT2, sT2, sT1)); a("s_add_u32 s%d, s%d, 224" % (sT2, sT2))
            a("s_cmp_lt_u32 s2, 224")
            a("s_cselect_b32 s48, s2, s%d" % sT2)
        else:
            a("s_mov_b32 s48, s2")
        a("s_mul_i32 s%d, s48, 205" % sCG)
        a("s_lshr_b32 s%d, s%d, 11" % (sCG, sCG))
        a("s_mul_i32 s%d, s%d, 10" % (sRB, sCG))
        a("s_sub_u32 s%d, s48, s%d" % (sRB, sRB))
        a("s_mov_b32 s%d, 0" % sSPIN)
        a("s_waitcnt lgkmcnt(0)")
        a("s_mov_b32 s%d, s48" % sN)
        a("s_add_u32 s%d, s%d, s%d" % (sK, sK, sT0)); a("s_addc_u32 s%d, s%d, 0" % (sK + 1, sK + 1))
        a("s_add_u32 s%d, s%d, s%d" % (sV, sV, sT0)); a("s_addc_u32 s%d, s%d, 0" % (sV + 1, sV + 1))
    def kv_load(self, which, i):
        a = self.a
        base = sK if which == "K" else sV
        reg = (vKD if which == "K" else vVD) + 4 * i
        grp, t = divmod(i, 3)
        ki = self.o.get("kvint", 0)
        if ki:
            if grp > 0 and t == 0:
                a("s_add_u32 s%d, s%d, %d" % (base, base, 196608 if ki == 1 else 24576)); a("s_addc_u32 s%d, s%d, 0" % (base + 1, base + 1))
            off = t * 128
        else:
            if grp > 0 and grp % 2 == 0 and t == 0:
                a("s_add_u32 s%d, s%d, 6144" % (base, base)); a("s_addc_u32 s%d, s%d, 0" % (base + 1, base + 1))
            off = (grp % 2) * 3072 + t * 128
        return self.vm("global_load_dwordx4 v[%d:%d], v%d, s[%d:%d] offset:%d %s" % (reg, reg + 3, vKO, base, base + 1, off, self.nt))
    def consts(self):
        a = self.a
        a("v_and_b32 v%d, 1, v%d" % (vT, vL))
        a("v_lshlrev_b32 v%d, 4, v%d" % (vT, vT))
        a("v_mov_b32 v%d, 0xffff" % (vT + 1))
        a("v_lshlrev_b32 v%d, v%d, v%d" % (vT + 1, vT, vT + 1))
        a("v_bfe_u32 v%d, v%d, 1, 2" % (vT + 2, vL))
        for v in range(4): a("v_cmp_eq_u32 s[%d:%d], %d, v%d" % (sM0 + 2 * v, sM0 + 2 * v + 1, v, vT + 2))
        a("s_nop 0")
        for v in range(4): a("v_cndmask_b32 v%d, 0, v%d, s[%d:%d]" % (vM + v, vT + 1, sM0 + 2 * v, sM0 + 2 * v + 1))
        a("v_bfe_u32 v%d, v%d, 4, 1" % (vT, vL))
        a("v_lshlrev_b32 v%d, 4, v%d" % (vT, vT))
        a("v_lshl_add_u32 v%d, v%d, 5, v%d" % (vLDSW, vL7, vT))
        a("v_mov_b32 v%d, 0xff" % vFF)
        a("s_mov_b32 s%d, 0x0c0c0400" % sSELA)
        a("s_mov_b32 s%d, 0x0c040100" % sSELB)
        a("s_mov_b32 s%d, 0x04020100" % sSELC)
        a("s_add_u32 s%d, s%d, 0x%x" % (sO, sWS, WS_O)); a("s_addc_u32 s%d, s%d, 0" % (sO + 1, sWS + 1))
        a("s_add_u32 s%d, s%d, 0x%x" % (sOUT2, sWS, WS_OUT2)); a("s_addc_u32 s%d, s%d, 0" % (sOUT2 + 1, sWS + 1))
    def epoch_load(self):
        self.a("s_load_dword s%d, s[%d:%d], 0x%x" % (sE, sWS, sWS + 1, WS_EPOCH))
    def epoch_finish(self):
        a = self.a
        a("s_add_u32 s%d, s%d, 1" % (sE, sE))
        a("s_and_b32 s%d, s%d, 0xff" % (sTAG, sE))
        a("s_mul_i32 s%d, s%d, 0x01010101" % (sTAG4, sTAG))
    def tile_addr(self, dst, stride, base, colshift=0, sw=None):
        a = self.a
        a("v_lshrrev_b32 v%d, 5, v%d" % (dst, vL))
        a("s_lshl_b32 s%d, s%d, 1" % (sT0, sW if sw is None else sw))
        a("v_add_u32 v%d, s%d, v%d" % (dst, sT0, dst))
        a("v_mul_u32_u24 v%d, %d, v%d" % (dst, stride, dst))
        if colshift: a("v_lshl_add_u32 v%d, v%d, %d, v%d" % (dst, vLDSW, colshift, dst))
        else: a("v_add_u32 v%d, v%d, v%d" % (dst, dst, vLDSW))
        if base: a("v_add_u32 v%d, %d, v%d" % (dst, base, dst))
    def code_prefetch(self, dst):
        a = self.a
        a("s_getpc_b64 s[%d:%d]" % (sT0, sT1))
        lab = a.newlabel("Lpc"); a.label(lab)
        a("s_sub_u32 s%d, s%d, %s-%s" % (sT0, sT0, lab, KNAME))
        a("s_subb_u32 s%d, s%d, 0" % (sT1, sT1))
        a("s_lshr_b32 s%d, s2, 3" % sT2); a("s_and_b32 s%d, s%d, 7" % (sT2, sT2))
        a("s_lshl_b32 s%d, s%d, 2" % (sT2, sT2)); a("s_add_u32 s%d, s%d, s%d" % (sT2, sT2, sW))
        a("s_lshl_b32 s%d, s%d, 10" % (sT2, sT2))
        a("v_lshl_add_u32 v%d, v%d, 4, s%d" % (vT, vL, sT2))
        a("v_min_u32 v%d, L_codeend-%s-16, v%d" % (vT, KNAME, vT))
        return self.vm("global_load_dwordx4 v[%d:%d], v%d, s[%d:%d]" % (dst, dst + 3, vT, sT0, sT1))
    def layernorm(self, hx, own):
        a = self.a; t = vT
        self.wait(hx)
        u = vX + 6
        for k in range(5):
            a("v_lshlrev_b32 v%d, 16, v%d" % (u + 2 * k, vX + k))
            a("v_and_b32 v%d, 0xffff0000, v%d" % (u + 2 * k + 1, vX + k))
        a("v_add_f32 v%d, v%d, v%d" % (t, u, u + 1))
        for k in range(2, 10): a("v_add_f32 v%d, v%d, v%d" % (t, t, u + k))
        self.allreduce_sgpr(t, "v_add_f32", sT0)
        a("v_mov_b32 v%d, 0x%08x" % (t + 1, INV640))
        a("v_mul_f32 v%d, s%d, v%d" % (t + 2, sT0, t + 1))
        a("v_sub_f32 v%d, v%d, v%d" % (u, u, t + 2))
        a("v_mul_f32 v%d, v%d, v%d" % (t, u, u))
        for k in range(1, 10):
            a("v_sub_f32 v%d, v%d, v%d" % (u + k, u + k, t + 2))
            a("v_fmac_f32 v%d, v%d, v%d" % (t, u + k, u + k))
        self.allreduce_sgpr(t, "v_add_f32", sT0)
        a("v_mul_f32 v%d, s%d, v%d" % (t + 3, sT0, t + 1))
        self.round_bf16(t + 2, t + 2)
        self.round_bf16(t + 3, t + 3)
        a("v_add_f32 v%d, 0x%08x, v%d" % (t + 3, EPS, t + 3))
        self.round_bf16(t + 3, t + 3)
        a("v_sqrt_f32 v%d, v%d" % (t + 3, t + 3)); a("s_nop 0")
        self.round_bf16(t + 3, t + 3)
        a("v_rcp_f32 v%d, v%d" % (t + 5, t + 3))
        for src, dst in own:
            a("v_lshlrev_b32 v%d, 16, v%d" % (t + 4, src))
            a("v_sub_f32 v%d, v%d, v%d" % (t + 4, t + 4, t + 2))
            self.round_bf16(t + 4, t + 4)
            a("v_mul_f32 v%d, v%d, v%d" % (t + 6, t + 4, t + 5))
            a("v_fma_f32 v%d, -v%d, v%d, v%d" % (t + 7, t + 6, t + 3, t + 4))
            a("v_fma_f32 v%d, v%d, v%d, v%d" % (dst, t + 7, t + 5, t + 6))

    def arrive(self, c):
        a = self.a
        self.lgkm0()
        a("v_mov_b32 v%d, %d" % (vT + 14, L_CNT + 4 * c)); a("v_mov_b32 v%d, 1" % (vT + 15))
        a("s_mov_b64 exec, 1")
        a("ds_add_u32 v%d, v%d" % (vT + 14, vT + 15))
        self.exec_all()
    def await_cnt(self, c, target):
        a = self.a
        lp = a.newlabel("Lcw"); ok = a.newlabel("Lcok")
        a("v_mov_b32 v%d, %d" % (vT + 14, L_CNT + 4 * c))
        a.label(lp)
        a("ds_read_b32 v%d, v%d" % (vT + 15, vT + 14))
        self.lgkm0()
        a("v_readfirstlane_b32 s%d, v%d" % (sT0, vT + 15))
        a("s_add_u32 s%d, s%d, 1" % (sSPIN, sSPIN))
        a("s_cmp_ge_u32 s%d, %d" % (sT0, target))
        a("s_cbranch_scc1 %s" % ok)
        a("s_cmp_gt_u32 s%d, 4000000" % sSPIN)
        a("s_cbranch_scc1 %s" % ok)
        a("s_sleep 1")
        a("s_branch %s" % lp)
        a.label(ok)

    def phaseq(self, hlast, A, PQ, PD):
        a = self.a; t = vT
        self.wait(hlast)
        self.stamp(3)
        for g in range(4):
            for tt in range(3):
                c = "0" if g == 0 else "v[%d:%d]" % (PD + 4 * tt, PD + 4 * tt + 3)
                B = PQ + 12 * g + 4 * tt
                a("v_mfma_f32_16x16x32_bf16 v[%d:%d], v[%d:%d], v[%d:%d], %s" % (PD + 4 * tt, PD + 4 * tt + 3, A[g], A[g] + 3, B, B + 3, c))
        self.tile_addr(t, 768, L_STG, sw=sWW)
        a("v_and_b32 v%d, 3, v%d" % (t + 2, vL)); a("v_mul_u32_u24 v%d, 1536, v%d" % (t + 2, t + 2))
        a("v_lshrrev_b32 v%d, 2, v%d" % (t + 6, vL)); a("v_min_u32 v%d, 11, v%d" % (t + 6, t + 6))
        a("s_mul_i32 s%d, s%d, 12" % (sT1, sWW)); a("v_add_u32 v%d, s%d, v%d" % (t + 6, sT1, t + 6))
        a("v_lshl_add_u32 v%d, v%d, 4, v%d" % (t + 3, t + 6, t + 2))
        a("s_mul_i32 s%d, s%d, %d" % (sT1, sN, QP_STRIDE))
        a("v_lshl_add_u32 v%d, v%d, 4, s%d" % (t + 5, t + 6, sT1))
        self.exec_valid()
        for tt in range(3): a("ds_write_b128 v%d, v[%d:%d] offset:%d" % (t, PD + 4 * tt, PD + 4 * tt + 3, 256 * tt))
        self.exec_all()
        self.arrive(0)
        self.epoch_finish()
        self.await_cnt(0, 4)
        self.stamp(4)
        R = PD
        a("ds_read_b128 v[%d:%d], v%d offset:%d" % (R, R + 3, t + 3, L_STG))
        a("ds_read_b128 v[%d:%d], v%d offset:%d" % (R + 4, R + 7, t + 3, L_STG + 768))
        self.lgkm0()
        self.pk_add(R, R, R + 4); self.pk_add(R + 2, R + 2, R + 6)
        a("s_nop 1")
        for m in ("quad_perm:[1,0,3,2]", "quad_perm:[2,3,0,1]"):
            for r in (R, R + 1, R + 2, R + 3): a("v_add_f32_dpp v%d, v%d, v%d %s%s" % (r, r, r, m, DPP_ALL))
        self.tagit([R, R + 1, R + 2, R + 3])
        self.exec_set(0x11111111, 0x00001111)
        self.vm("global_store_dwordx4 v%d, v[%d:%d], s[%d:%d] sc1" % (t + 5, R, R + 3, sWS, sWS + 1))
        self.exec_all()
        self.stamp(5)

    GQ = vVD
    GU = vVD + 8
    GA = vVD + 32
    def q_addrs(self, normal):
        a = self.a; t = vT; GA = self.GA
        a("s_mul_i32 s%d, s%d, %d" % (sT0, sH, 5 * QP_STRIDE)); a("s_mul_i32 s%d, s%d, 192" % (sT1, sWW))
        a("s_add_u32 s%d, s%d, s%d" % (sT0, sT0, sT1))
        a("v_min_u32 v%d, 4, v%d" % (t + 1, vL7))
        a("v_mul_u32_u24 v%d, %d, v%d" % (t + 1, QP_STRIDE, t + 1))
        a("v_lshl_add_u32 v%d, v%d, 4, v%d" % (t + 2, vL8, t + 1))
        a("v_add_u32 v%d, s%d, v%d" % (GA, sT0, t + 2))
        if normal:
            a("s_mul_i32 s%d, s%d, 171" % (sT0, sCG)); a("s_lshr_b32 s%d, s%d, 9" % (sT0, sT0))
            a("s_mul_i32 s%d, s%d, 3" % (sT1, sT0)); a("s_sub_u32 s%d, s%d, s%d" % (sT1, sCG, sT1))
            a("s_add_u32 s%d, s%d, 32" % (sT0, sT0)); a("s_mul_i32 s%d, s%d, %d" % (sT0, sT0, 5 * QP_STRIDE))
            a("s_lshl_b32 s%d, s%d, 8" % (sT1, sT1)); a("s_add_u32 s%d, s%d, s%d" % (sT0, sT0, sT1))
            a("s_lshl_b32 s%d, s%d, 6" % (sT1, sWW)); a("s_add_u32 s%d, s%d, s%d" % (sT0, sT0, sT1))
            a("v_lshrrev_b32 v%d, 2, v%d" % (t + 2, vL8))
            a("v_lshl_add_u32 v%d, v%d, 4, v%d" % (t + 2, t + 2, t + 1))
            a("v_add_u32 v%d, s%d, v%d" % (GA + 1, sT0, t + 2))
            a("v_add_u32 v%d, %d, v%d" % (GA + 2, 40 * QP_STRIDE, GA + 1))
    def q_loads(self, normal):
        a = self.a; GQ, GU, GA = self.GQ, self.GU, self.GA
        for k in range(8): a("v_mov_b32 v%d, s%d" % (GQ + k, sTAG))
        if normal:
            for k in range(16): a("v_mov_b32 v%d, s%d" % (GU + k, sTAG))
        self.exec_set(0x1f1f1f1f, 0x1f1f1f1f)
        a("global_load_dwordx4 v[%d:%d], v%d, s[%d:%d] sc1" % (GQ, GQ + 3, GA, sWS, sWS + 1))
        if normal:
            a("global_load_dwordx4 v[%d:%d], v%d, s[%d:%d] sc1" % (GU, GU + 3, GA + 1, sWS, sWS + 1))
            a("global_load_dwordx4 v[%d:%d], v%d, s[%d:%d] offset:32 sc1" % (GU + 4, GU + 7, GA + 1, sWS, sWS + 1))
            a("global_load_dwordx4 v[%d:%d], v%d, s[%d:%d] sc1" % (GU + 8, GU + 11, GA + 2, sWS, sWS + 1))
            a("global_load_dwordx4 v[%d:%d], v%d, s[%d:%d] offset:32 sc1" % (GU + 12, GU + 15, GA + 2, sWS, sWS + 1))
        a("s_mov_b32 exec_hi, 0")
        a("global_load_dwordx4 v[%d:%d], v%d, s[%d:%d] offset:128 sc1" % (GQ + 4, GQ + 7, GA, sWS, sWS + 1))
        self.exec_all()
    def q_check(self, normal):
        g = [self.GQ, self.GQ + 4]
        if normal: g += [self.GU, self.GU + 4, self.GU + 8, self.GU + 12]
        self.check_tags(g, vT)
    def q_reduce(self, normal, WD, DF):
        a = self.a; t = vT; GQ, GU = self.GQ, self.GU
        regs = [GQ + k for k in range(8)]
        self.untag(regs)
        self.reduce8(regs)
        for i in range(2):
            a("v_cvt_pk_bf16_f32 v%d, v%d, v%d" % (t + 2 * i, GQ + 4 * i, GQ + 4 * i + 1))
            a("v_cvt_pk_bf16_f32 v%d, v%d, v%d" % (t + 2 * i + 1, GQ + 4 * i + 2, GQ + 4 * i + 3))
        a("s_mul_i32 s%d, s%d, 96" % (sT0, sWW)); a("s_add_u32 s%d, s%d, %d" % (sT0, sT0, L_Q))
        a("v_lshl_add_u32 v%d, v%d, 3, s%d" % (t + 6, vL8, sT0))
        self.exec_set(0x01010101, 0x01010101)
        a("ds_write_b64 v%d, v[%d:%d]" % (t + 6, t, t + 1))
        a("s_mov_b32 exec_hi, 0")
        a("ds_write_b64 v%d, v[%d:%d] offset:64" % (t + 6, t + 2, t + 3))
        self.exec_all()
        self.arrive(1)
        self.stamp(7)
        if normal:
            a("v_and_b32 v%d, 3, v%d" % (t, vL8))
            for k in (1, 2, 3): a("v_cmp_eq_u32 s[%d:%d], %d, v%d" % (sM0 + 2 * k, sM0 + 2 * k + 1, k, t))
            a("s_nop 0")
            for q in range(4):
                for k in (1, 2, 3):
                    a("v_cndmask_b32 v%d, v%d, v%d, s[%d:%d]" % (GU + 4 * q, GU + 4 * q, GU + 4 * q + k, sM0 + 2 * k, sM0 + 2 * k + 1))
            sel = [GU, GU + 4, GU + 8, GU + 12]
            self.untag(sel)
            self.reduce8(sel)
            for g, u in ((GU, GU + 8), (GU + 4, GU + 12)):
                self.round_bf16(g, g); self.round_bf16(u, u)
                self.silu(g, g, t + 3)
                self.round_bf16(g, g)
                a("v_mul_f32 v%d, v%d, v%d" % (g, g, u))
            A0, A1 = t + 4, t + 8
            self.build_A(A0, GU); self.build_A(A1, GU + 4)
            a("s_nop 1")
            a("v_mfma_f32_16x16x32_bf16 v[%d:%d], v[%d:%d], v[%d:%d], 0" % (DF, DF + 3, A0, A0 + 3, WD, WD + 3))
            a("v_mfma_f32_16x16x32_bf16 v[%d:%d], v[%d:%d], v[%d:%d], v[%d:%d]" % (DF, DF + 3, A1, A1 + 3, WD + 4, WD + 7, DF, DF + 3))
            self.tile_addr(t + 12, 256, L_F, sw=sWW)
            a("s_nop 4")
            self.exec_valid()
            a("ds_write_b128 v%d, v[%d:%d]" % (t + 12, DF, DF + 3))
            self.exec_all()
            self.arrive(2)
    def f_publish(self):
        a = self.a; t = vT; R = vX
        self.await_cnt(2, 4)
        a("v_and_b32 v%d, 3, v%d" % (t, vL)); a("v_lshlrev_b32 v%d, 9, v%d" % (t, t))
        a("v_lshrrev_b32 v%d, 2, v%d" % (t + 1, vL))
        a("v_lshl_add_u32 v%d, v%d, 4, v%d" % (t, t + 1, t))
        a("ds_read_b128 v[%d:%d], v%d offset:%d" % (R, R + 3, t, L_F))
        a("ds_read_b128 v[%d:%d], v%d offset:%d" % (R + 4, R + 7, t, L_F + 256))
        a("s_mul_i32 s%d, s%d, %d" % (sT3, sN, OUT2_STRIDE)); a("s_add_u32 s%d, s%d, 384" % (sT3, sT3))
        a("v_lshlrev_b32 v%d, 4, v%d" % (t + 1, t + 1)); a("v_add_u32 v%d, s%d, v%d" % (t + 1, sT3, t + 1))
        self.lgkm0()
        self.pk_add(R, R, R + 4); self.pk_add(R + 2, R + 2, R + 6)
        a("s_nop 1")
        for m in ("quad_perm:[1,0,3,2]", "quad_perm:[2,3,0,1]"):
            for k in range(4): a("v_add_f32_dpp v%d, v%d, v%d %s%s" % (R + k, R + k, R + k, m, DPP_ALL))
        self.tagit([R, R + 1, R + 2, R + 3])
        self.exec_set(0x11111111, 0x11111111)
        self.vm("global_store_dwordx4 v%d, v[%d:%d], s[%d:%d] sc1" % (t + 1, R, R + 3, sOUT2, sOUT2 + 1), "w4")
        self.exec_all()
    def read_qf(self):
        a = self.a
        a("v_lshlrev_b32 v%d, 4, v%d" % (vT, vL7))
        for t in range(3): a("ds_read_b128 v[%d:%d], v%d offset:%d" % (vQF + 4 * t, vQF + 4 * t + 3, vT, L_Q + 128 * t))
        self.lgkm0()
    def qk_groups(self, groups):
        a = self.a
        for t in range(3):
            for v in range(4):
                for g in groups:
                    k = vKD + 12 * g + 4 * t + v
                    src2 = "0" if (t == 0 and v == 0) else "v%d" % (vSC + g)
                    a("v_dot2_f32_bf16 v%d, v%d, v%d, %s" % (vSC + g, k, vQF + 4 * t + v, src2))
    def softmax(self):
        a = self.a; t = vT
        a("s_nop 2")
        self.reduce8([vSC + g for g in range(8)])
        a("s_mov_b32 s%d, 0x%08x" % (sT0, SCALE))
        for g in range(0, 8, 2):
            a("v_cvt_pk_bf16_f32 v%d, v%d, v%d" % (t, vSC + g, vSC + g + 1))
            a("v_lshlrev_b32 v%d, 16, v%d" % (vSC + g, t))
            a("v_and_b32 v%d, 0xffff0000, v%d" % (vSC + g + 1, t))
            a("v_mul_f32 v%d, s%d, v%d" % (vSC + g, sT0, vSC + g))
            a("v_mul_f32 v%d, s%d, v%d" % (vSC + g + 1, sT0, vSC + g + 1))
            a("v_cvt_pk_bf16_f32 v%d, v%d, v%d" % (t, vSC + g, vSC + g + 1))
            a("v_lshlrev_b32 v%d, 16, v%d" % (vSC + g, t))
            a("v_and_b32 v%d, 0xffff0000, v%d" % (vSC + g + 1, t))
        a("v_max3_f32 v%d, v%d, v%d, v%d" % (t, vSC, vSC + 1, vSC + 2))
        a("v_max3_f32 v%d, v%d, v%d, v%d" % (t + 1, vSC + 3, vSC + 4, vSC + 5))
        a("v_max3_f32 v%d, v%d, v%d, v%d" % (t, t, vSC + 6, vSC + 7))
        a("v_max_f32 v%d, v%d, v%d" % (t, t, t + 1))
        self.slots_reduce_sgpr(t, "v_max_f32", sMW)
        a("s_mov_b32 s%d, 0x%08x" % (sT0, LOG2E))
        for g in range(8):
            a("v_subrev_f32 v%d, s%d, v%d" % (vSC + g, sMW, vSC + g))
            a("v_mul_f32 v%d, s%d, v%d" % (vSC + g, sT0, vSC + g))
            a("v_exp_f32 v%d, v%d" % (vSC + g, vSC + g))
        a("s_nop 0")
        a("v_add_f32 v%d, v%d, v%d" % (t, vSC, vSC + 1)); a("v_add_f32 v%d, v%d, v%d" % (t + 1, vSC + 2, vSC + 3))
        a("v_add_f32 v%d, v%d, v%d" % (t + 2, vSC + 4, vSC + 5)); a("v_add_f32 v%d, v%d, v%d" % (t + 3, vSC + 6, vSC + 7))
        a("v_add_f32 v%d, v%d, v%d" % (t, t, t + 1)); a("v_add_f32 v%d, v%d, v%d" % (t + 2, t + 2, t + 3))
        a("v_add_f32 v%d, v%d, v%d" % (t, t, t + 2))
        self.slots_reduce_sgpr(t, "v_add_f32", sLW)
        a("s_lshl_b32 s%d, s%d, 3" % (sT0, sW)); a("s_add_u32 s%d, s%d, %d" % (sT0, sT0, L_ML))
        a("v_mov_b32 v%d, s%d" % (t, sT0))
        a("v_mov_b32 v%d, s%d" % (t + 2, sMW)); a("v_mov_b32 v%d, s%d" % (t + 3, sLW))
        a("s_mov_b64 exec, 1")
        a("ds_write_b64 v%d, v[%d:%d]" % (t, t + 2, t + 3))
        self.exec_all()
        self.arrive(3)
    def build_PA(self):
        for g in range(8): self.build_A(vKD + 4 * g, vSC + g)
    def pv_group(self, g):
        DA = vKD + 32
        for t in range(3):
            B = vVD + 12 * g + 4 * t
            c = "0" if g == 0 else "v[%d:%d]" % (DA + 4 * t, DA + 4 * t + 3)
            self.a("v_mfma_f32_16x16x32_bf16 v[%d:%d], v[%d:%d], v[%d:%d], %s" % (DA + 4 * t, DA + 4 * t + 3, vKD + 4 * g, vKD + 4 * g + 3, B, B + 3, c))
    def wg_factor(self):
        a = self.a; t = vT
        self.await_cnt(3, 8)
        a("v_lshlrev_b32 v%d, 3, v%d" % (t, vL7))
        a("ds_read_b64 v[%d:%d], v%d offset:%d" % (t + 2, t + 3, t, L_ML))
        self.lgkm0()
        a("v_mov_b32 v%d, v%d" % (t + 4, t + 2))
        a("s_nop 1")
        self.reduce8([t + 4], "v_max_f32")
        a("s_mov_b32 s%d, 0x%08x" % (sT0, LOG2E))
        a("v_sub_f32 v%d, s%d, v%d" % (vFAC, sMW, t + 4))
        a("v_mul_f32 v%d, s%d, v%d" % (vFAC, sT0, vFAC))
        a("v_exp_f32 v%d, v%d" % (vFAC, vFAC))
        lab = a.newlabel("Lskip_ml")
        a("s_cmp_eq_u32 s%d, 0" % sW); a("s_cbranch_scc0 %s" % lab)
        a("v_sub_f32 v%d, v%d, v%d" % (t + 5, t + 2, t + 4))
        a("v_mul_f32 v%d, s%d, v%d" % (t + 5, sT0, t + 5))
        a("v_exp_f32 v%d, v%d" % (t + 5, t + 5)); a("s_nop 0")
        a("v_mul_f32 v%d, v%d, v%d" % (t + 5, t + 5, t + 3))
        a("s_nop 1")
        self.reduce8([t + 5])
        a("v_mov_b32 v%d, v%d\nv_mov_b32 v%d, v%d" % (t + 6, t + 4, t + 7, t + 5))
        self.tagit([t + 4, t + 5, t + 6, t + 7])
        a("s_mul_i32 s%d, s2, %d" % (sT1, OUT2_STRIDE)); a("v_mov_b32 v%d, s%d" % (t, sT1))
        a("s_mov_b64 exec, 1")
        self.vm("global_store_dwordx4 v%d, v[%d:%d], s[%d:%d] sc1" % (t, t + 4, t + 7, sOUT2, sOUT2 + 1), "w0")
        self.exec_all()
        a.label(lab)
    def pv_stage(self, scale=True):
        a = self.a; t = vT; DA = vKD + 32
        self.tile_addr(t, 768, L_STG)
        a("s_nop 3")
        if scale:
            for k in range(12): a("v_mul_f32 v%d, v%d, v%d" % (DA + k, vFAC, DA + k))
        self.exec_valid()
        for tt in range(3): a("ds_write_b128 v%d, v[%d:%d] offset:%d" % (t, DA + 4 * tt, DA + 4 * tt + 3, 256 * tt))
        self.exec_all()
    def wo_loads(self):
        a = self.a; WO = vKD + 48
        a("v_mul_u32_u24 v%d, 5120, v%d" % (vX + 13, vL8))
        a("v_lshl_add_u32 v%d, v%d, 4, v%d" % (vX + 13, vL7, vX + 13))
        for r in range(4):
            self.vm("global_load_dwordx4 v[%d:%d], v%d, s[%d:%d] offset:%d %s" % (WO + 4 * r, WO + 4 * r + 3, vX + 13, sWO, sWO + 1, 1280 * r, self.nt))
    def wo_base(self):
        a = self.a
        a("s_lshl_b32 s%d, s%d, 3" % (sT1, sCG)); a("s_add_u32 s%d, s%d, s%d" % (sT1, sT1, sW))
        a("s_lshl_b32 s%d, s%d, 7" % (sT3, sRB))
        a("s_mul_i32 s%d, s%d, %d" % (sT2, sT1, 32 * 1280)); a("s_add_u32 s%d, s%d, s%d" % (sT2, sT2, sT3))
        a("s_add_u32 s%d, s%d, s%d" % (sWO, sWO, sT2)); a("s_addc_u32 s%d, s%d, 0" % (sWO + 1, sWO + 1))

    def tail_publish_o(self):
        a = self.a; t = vT
        a("s_lshl_b32 s%d, s%d, 7" % (sT0, sW))
        a("v_lshl_add_u32 v%d, v%d, 4, s%d" % (t + 1, vL8, sT0))
        a("v_mul_u32_u24 v%d, 1536, v%d" % (t + 2, vL7))
        a("v_add_u32 v%d, v%d, v%d" % (t + 2, t + 1, t + 2))
        a("s_lshl_b32 s%d, s%d, 3" % (sT0, sH)); a("s_add_u32 s%d, s%d, s%d" % (sT0, sT0, sJ))
        a("s_mul_i32 s%d, s%d, 768" % (sT0, sT0))
        a("v_add_u32 v%d, s%d, v%d" % (t + 3, sT0, t + 1))
        self.lgkm0()
        self.xstamp(8)
        a("s_barrier")
        self.stamp(10)
        lab = a.newlabel("Lskip_o")
        a("s_cmp_lt_u32 s%d, 6" % sW); a("s_cbranch_scc0 %s" % lab)
        R = vX
        a("ds_read_b128 v[%d:%d], v%d offset:%d" % (R, R + 3, t + 2, L_STG))
        a("ds_read_b128 v[%d:%d], v%d offset:%d" % (R + 4, R + 7, t + 2, L_STG + 768))
        self.lgkm0()
        self.pk_add(R, R, R + 4); self.pk_add(R + 2, R + 2, R + 6)
        a("s_nop 1")
        self.reduce8([R, R + 1, R + 2, R + 3])
        self.tagit([R, R + 1, R + 2, R + 3])
        self.exec_set(0x01010101, 0x01010101)
        a("global_store_dwordx4 v%d, v[%d:%d], s[%d:%d] sc1" % (t + 3, R, R + 3, sO, sO + 1))
        self.exec_all()
        a.label(lab)
    def hop1_wo(self):
        a = self.a; t = vT; RL = vKD + 64; R = vX + 4; M = vX + 8
        a("s_lshl_b32 s%d, s%d, 3" % (sT0, sCG)); a("s_add_u32 s%d, s%d, s%d" % (sT0, sT0, sW))
        a("s_mul_i32 s%d, s%d, 171" % (sT1, sT0)); a("s_lshr_b32 s%d, s%d, 10" % (sT1, sT1))
        a("s_mul_i32 s%d, s%d, 6" % (sT2, sT1)); a("s_sub_u32 s%d, s%d, s%d" % (sT2, sT0, sT2))
        if self.mapping == "lin":
            a("s_lshl_b32 s%d, s%d, 3" % (sT3, sT1)); a("v_add_u32 v%d, s%d, v%d" % (t + 7, sT3, vL7))
        else:
            a("s_lshr_b32 s%d, s%d, 2" % (sT3, sT1)); a("s_and_b32 s%d, s%d, 3" % (sT0, sT1))
            a("s_lshl_b32 s%d, s%d, 3" % (sT0, sT0)); a("s_add_u32 s%d, s%d, s%d" % (sT3, sT3, sT0))
            a("v_lshl_add_u32 v%d, v%d, 5, s%d" % (t + 7, vL7, sT3))
        a("v_mul_u32_u24 v%d, %d, v%d" % (t + 7, OUT2_STRIDE, t + 7))
        a("s_mul_i32 s%d, s%d, 6144" % (sT1, sT1)); a("s_lshl_b32 s%d, s%d, 7" % (sT2, sT2))
        a("s_add_u32 s%d, s%d, s%d" % (sT1, sT1, sT2))
        a("v_mul_u32_u24 v%d, 768, v%d" % (t + 8, vL7))
        a("v_lshl_add_u32 v%d, v%d, 4, v%d" % (t + 8, vL8, t + 8))
        a("v_add_u32 v%d, s%d, v%d" % (t + 8, sT1, t + 8))
        ldm = "global_load_dwordx4 v[%d:%d], v%d, s[%d:%d] sc1" % (M, M + 3, t + 7, sOUT2, sOUT2 + 1)
        ld = "global_load_dwordx4 v[%d:%d], v%d, s[%d:%d] sc1" % (RL, RL + 3, t + 8, sO, sO + 1)
        a(ldm); a(ld)
        self.tile_addr(t + 9, 256, L_S)
        a("s_waitcnt vmcnt(1)")
        self.xstamp(3)
        def mlre(): a(ldm)
        self.poll_retry("ml", lambda: self.check_tags([M], t), mlre, sleep=self.o.get("osleep", 1), masked=bool(self.o.get("masked", 1)))
        self.xstamp(4)
        self.untag([M, M + 1])
        a("v_mov_b32 v%d, v%d" % (t, M)); a("s_nop 1")
        self.reduce8([t], "v_max_f32")
        a("s_mov_b32 s%d, 0x%08x" % (sT0, LOG2E))
        a("v_sub_f32 v%d, v%d, v%d" % (t, M, t)); a("v_mul_f32 v%d, s%d, v%d" % (t, sT0, t))
        a("v_exp_f32 v%d, v%d" % (t, t)); a("s_nop 0")
        a("v_mul_f32 v%d, v%d, v%d" % (t + 1, t, M + 1)); a("s_nop 1")
        self.reduce8([t + 1])
        a("v_rcp_f32 v%d, v%d" % (t + 1, t + 1)); a("s_nop 0")
        a("v_mul_f32 v%d, v%d, v%d" % (t + 2, t, t + 1))
        a("s_waitcnt vmcnt(0)")
        self.xstamp(5)
        if self.o.get("tdiag", 0): a("s_mov_b32 s%d, 0" % sSPIN)
        if self.o.get("pipe", 1):
            self.poll_pipe("o", lambda: self.check_tags([RL], t), lambda: a(ld), half_rtt=self.o.get("half", 8))
        else:
            self.poll_retry("o", lambda: self.check_tags([RL], t), lambda: a(ld), sleep=self.o.get("osleep", 1), masked=bool(self.o.get("masked", 1)))
        if self.o.get("tdiag", 0):
            a("s_waitcnt lgkmcnt(0)")
            a("s_mul_i32 s%d, s%d, 100" % (sT0, sSPIN))
            a("s_add_u32 s%d, s%d, s%d" % (sSTAMP + 12, sSTAMP, sT0)); a("s_addc_u32 s%d, s%d, 0" % (sSTAMP + 13, sSTAMP + 1))
        self.tstamp(11)
        for k in range(4): a("v_and_b32 v%d, 0xffffff00, v%d" % (R + k, RL + k))
        for k in range(4): a("v_mul_f32 v%d, v%d, v%d" % (R + k, t + 2, R + k))
        self.reduce8([R, R + 1, R + 2, R + 3])
        A = vKD
        for r in range(4): self.build_A(A + 4 * r, R + r)
        WO = vKD + 48; DS = vKD + 44
        a("s_nop 1")
        for r in range(4):
            c = "0" if r == 0 else "v[%d:%d]" % (DS, DS + 3)
            a("v_mfma_f32_16x16x32_bf16 v[%d:%d], v[%d:%d], v[%d:%d], %s" % (DS, DS + 3, A + 4 * r, A + 4 * r + 3, WO + 4 * r, WO + 4 * r + 3, c))
        a("s_nop 7")
        self.exec_valid()
        a("ds_write_b128 v%d, v[%d:%d]" % (t + 9, DS, DS + 3))
        self.exec_all()
        self.lgkm0()
        self.xstamp(7)
        a("s_barrier")
        lab = a.newlabel("Lskip_s")
        a("s_cmp_eq_u32 s%d, 0" % sW); a("s_cbranch_scc0 %s" % lab)
        a("s_mul_i32 s%d, s%d, %d" % (sT3, sN, OUT2_STRIDE)); a("s_add_u32 s%d, s%d, 128" % (sT3, sT3))
        self.reduce16_publish(L_S, sT3, vX)
        self.tstamp(12)
        a.label(lab)
    def reduce16_publish(self, lbase, goff, R):
        a = self.a; t = vT
        a("v_and_b32 v%d, 3, v%d" % (t, vL)); a("v_lshlrev_b32 v%d, 10, v%d" % (t, t))
        a("v_lshrrev_b32 v%d, 2, v%d" % (t + 1, vL))
        a("v_lshl_add_u32 v%d, v%d, 4, v%d" % (t, t + 1, t))
        for k in range(4): a("ds_read_b128 v[%d:%d], v%d offset:%d" % (R + 4 * k, R + 4 * k + 3, t, lbase + 256 * k))
        a("v_lshlrev_b32 v%d, 4, v%d" % (t + 1, t + 1)); a("v_add_u32 v%d, s%d, v%d" % (t + 1, goff, t + 1))
        self.lgkm0()
        for k in (0, 2):
            self.pk_add(R + k, R + k, R + 4 + k); self.pk_add(R + 8 + k, R + 8 + k, R + 12 + k)
        for k in (0, 2): self.pk_add(R + k, R + k, R + 8 + k)
        a("s_nop 0")
        for m in ("quad_perm:[1,0,3,2]", "quad_perm:[2,3,0,1]"):
            for k in range(4): a("v_add_f32_dpp v%d, v%d, v%d %s%s" % (R + k, R + k, R + k, m, DPP_ALL))
        self.tagit([R, R + 1, R + 2, R + 3])
        self.exec_set(0x11111111, 0x11111111)
        a("global_store_dwordx4 v%d, v[%d:%d], s[%d:%d] sc1" % (t + 1, R, R + 3, sOUT2, sOUT2 + 1))
        self.exec_all()
    def final(self):
        a = self.a; t = vT
        lab = a.newlabel("Lskip_fin")
        if not self.o.get("finall", 0):
            a("s_cmp_eq_u32 s%d, 0" % sW); a("s_cbranch_scc0 %s" % lab)
        a("s_cmp_lt_u32 s%d, 250" % sN); a("s_cbranch_scc0 %s" % lab)
        a("s_sub_u32 s%d, s%d, 240" % (sT3, sN))
        a("v_lshrrev_b32 v%d, 4, v%d" % (t, vL))
        a("v_mul_u32_u24 v%d, %d, v%d" % (t, 10 * OUT2_STRIDE, t))
        a("v_and_b32 v%d, 15, v%d" % (t + 1, vL))
        a("v_lshl_add_u32 v%d, v%d, 4, v%d" % (t, t + 1, t))
        a("s_mul_i32 s%d, s%d, %d" % (sT0, sT3, OUT2_STRIDE))
        a("v_add_u32 v%d, s%d, v%d" % (t, sT0, t))
        AD = vKD
        for i in range(6): a("v_add_u32 v%d, %d, v%d" % (AD + i, i * 40 * OUT2_STRIDE, t))
        RF = vKD + 8; RS = vKD + 32
        a("s_lshl_b32 s%d, s%d, 7" % (sT0, sT3))
        a("v_lshl_add_u32 v%d, v%d, 3, s%d" % (t + 2, t + 1, sT0))
        XR = vKD + 56
        a("global_load_dwordx2 v[%d:%d], v%d, s[%d:%d]" % (XR, XR + 1, t + 2, sX, sX + 1))
        def loads(R, off):
            for i in range(6):
                a("global_load_dwordx4 v[%d:%d], v%d, s[%d:%d] offset:%d sc1" % (R + 4 * i, R + 4 * i + 3, AD + i, sOUT2, sOUT2 + 1, off))
        def check(R): self.check_tags([R + 4 * i for i in range(6)], t + 3)
        def total(R, masked=False):
            if not masked: self.untag([R + k for k in range(24)])
            for i in (1, 3, 5):
                for k in (0, 2): self.pk_add(R + 4 * (i - 1) + k, R + 4 * (i - 1) + k, R + 4 * i + k)
            for i in (2, 4):
                for k in (0, 2): self.pk_add(R + k, R + k, R + 4 * i + k)
            for sw in ("v_permlane16_swap_b32", "v_permlane32_swap_b32"):
                for k in range(4): a("v_mov_b32 v%d, v%d" % (R + 4 + k, R + k))
                a("s_nop 1")
                for k in range(4): a("%s v%d, v%d" % (sw, R + k, R + 4 + k))
                a("s_nop 1")
                for k in range(4): a("v_add_f32 v%d, v%d, v%d" % (R + k, R + k, R + 4 + k))
        loads(RF, 384)
        a("s_waitcnt vmcnt(0)")
        self.poll_retry("f", lambda: check(RF), lambda: loads(RF, 384))
        if not self.o.get("finall", 0): loads(RS, 128)
        total(RF)
        for k in range(4):
            self.round_bf16(RF + k, RF + k); self.silu(RF + k, RF + k, t + 5); self.round_bf16(RF + k, RF + k)
        a("v_lshlrev_b32 v%d, 16, v%d" % (t + 6, XR)); a("v_and_b32 v%d, 0xffff0000, v%d" % (t + 7, XR))
        a("v_lshlrev_b32 v%d, 16, v%d" % (t + 8, XR + 1)); a("v_and_b32 v%d, 0xffff0000, v%d" % (t + 9, XR + 1))
        if self.o.get("finall", 0):
            lp = a.newlabel("Lstag"); dn = a.newlabel("Lstagd")
            a("s_mov_b32 s%d, s%d" % (sT0, sW))
            a.label(lp)
            a("s_cmp_eq_u32 s%d, 0" % sT0); a("s_cbranch_scc1 %s" % dn)
            a("s_sleep %d" % self.o.get("stag", 2)); a("s_sub_u32 s%d, s%d, 1" % (sT0, sT0)); a("s_branch %s" % lp)
            a.label(dn)
            loads(RS, 128)
        a("s_waitcnt vmcnt(0)")
        if self.o.get("pipe", 1):
            self.poll_pipe("s", lambda: check(RS), lambda: loads(RS, 128), half_rtt=self.o.get("half", 8), nload=6)
        else:
            self.poll_retry("s", lambda: check(RS), lambda: loads(RS, 128), sleep=self.o.get("ssleep", 0))
        self.tstamp(13)
        RL = RS; RS = vKD + 60
        for k in range(24): a("v_and_b32 v%d, 0xffffff00, v%d" % (RS + k, RL + k))
        self.untagged = True
        total(RS, True)
        for k in range(4):
            self.round_bf16(RS + k, RS + k)
            a("v_mul_f32 v%d, v%d, v%d" % (RS + k, RS + k, RF + k))
            self.round_bf16(RS + k, RS + k)
            a("v_add_f32 v%d, v%d, v%d" % (RS + k, RS + k, t + 6 + k))
        a("v_cvt_pk_bf16_f32 v%d, v%d, v%d" % (t + 10, RS, RS + 1))
        a("v_cvt_pk_bf16_f32 v%d, v%d, v%d" % (t + 11, RS + 2, RS + 3))
        a("s_mov_b64 exec, 0xffff")
        a("global_store_dwordx2 v%d, v[%d:%d], s[%d:%d]" % (t + 2, t + 10, t + 11, sOUT, sOUT + 1))
        if self.o.get("dbgtime", 0):
            a("s_memrealtime s[98:99]")
            a("s_waitcnt lgkmcnt(0)")
            a("s_sub_u32 s98, s98, s96")
            a("s_sub_u32 s99, s%d, 240" % sN); a("s_lshl_b32 s99, s99, 2")
            a("s_mov_b64 exec, 1")
            a("v_mov_b32 v%d, s99" % (t + 12)); a("v_mov_b32 v%d, s98" % (t + 13))
            a("global_store_dword v%d, v%d, s[%d:%d]" % (t + 12, t + 13, sDBG, sDBG + 1))
        lab2 = a.newlabel("Lskip_ep")
        a("s_cmp_eq_u32 s%d, 240" % sN); a("s_cbranch_scc0 %s" % lab2)
        a("s_cmp_eq_u32 s%d, 0" % sW); a("s_cbranch_scc0 %s" % lab2)
        a("s_mov_b64 exec, 1")
        a("v_mov_b32 v%d, 0x%x" % (t + 12, WS_EPOCH)); a("v_mov_b32 v%d, s%d" % (t + 13, sE))
        a("global_store_dword v%d, v%d, s[%d:%d]" % (t + 12, t + 13, sWS, sWS + 1))
        a.label(lab2)
        self.exec_all()
        self.tstamp(14)
        a.label(lab)
    def write_stamps(self):
        if not self.stamps: return
        a = self.a
        lab = a.newlabel("Lskip_st")
        if not self.o.get("stamp_all", 0):
            a("s_cmp_eq_u32 s%d, %d" % (sW, self.o.get("stamp_wave", 0))); a("s_cbranch_scc0 %s" % lab)
        self.stamp(15)
        self.lgkm0()
        a("s_add_u32 s%d, s%d, 0x%x" % (sWS, sWS, STAMP_OFF)); a("s_addc_u32 s%d, s%d, 0" % (sWS + 1, sWS + 1))
        if self.o.get("stamp_all", 0):
            a("s_lshl_b32 s%d, s%d, 3" % (sT0, sN)); a("s_add_u32 s%d, s%d, s%d" % (sT0, sT0, sW)); a("s_lshl_b32 s%d, s%d, 7" % (sT0, sT0))
        else:
            a("s_lshl_b32 s%d, s%d, 7" % (sT0, sN))
        a("v_mov_b32 v%d, s%d" % (vT, sT0))
        a("s_mov_b64 exec, 1")
        for k in range(0, 16, 2):
            for q in range(4): a("v_mov_b32 v%d, s%d" % (vT + 4 + q, sSTAMP + 2 * k + q))
            a("global_store_dwordx4 v%d, v[%d:%d], s[%d:%d] offset:%d" % (vT, vT + 4, vT + 7, sWS, sWS + 1, 8 * k))
            a("s_nop 1")
        a.label(lab)
    def attention(self, hK, hV, after_issue=None):
        a = self.a
        self.await_cnt(1, 4)
        self.read_qf()
        self.wait(hK[11]); self.qk_groups([0, 1, 2, 3])
        self.wait(hK[23]); self.qk_groups([4, 5, 6, 7])
        self.softmax()
        self.stamp(8)
        self.build_PA()
        for g in range(7):
            self.wait(hV[3 * g + 2]); self.pv_group(g)

    def streamer(self, normal):
        a = self.a; o = self.o
        self.ops = []
        a("s_setprio %d" % o.get("prio_s", 2))
        DS = o.get("ds", 6)
        hs = [self.kv_load("K", 0), self.kv_load("K", 1)]
        self.b0()
        self.epoch_load()
        if o.get("pf", 1): self.code_prefetch(vX)
        items = [("K", i) for i in range(2, 24)] + [("V", i) for i in range(24)]
        for k, (m, i) in enumerate(items):
            n = len(hs)
            if DS and n - DS >= 0: self.wait(hs[n - DS])
            hs.append(self.kv_load(m, i))
            if n == 4: self.consts()
        hK = hs[:24]; hV = hs[24:]
        self.stamp(1)
        if o.get("so", 0):
            if normal:
                self.wo_base(); self.wo_loads()
            a("s_waitcnt vmcnt(0)")
            self.stamp(9)
            return
        self.lgkm0()
        self.epoch_finish()
        if normal: self.wo_base()
        self.attention(hK, hV)
        self.wait(hV[23]); self.pv_group(7)
        self.stamp(9)
        self.wg_factor()
        self.pv_stage(scale=True)
        if normal and o.get("wo_mode", 1) in (1, 2):
            self.await_cnt(4, 4)
            a("s_setprio 3")
            self.wo_loads()
        a("s_setprio 1")

    def b0(self):
        a = self.a
        a("v_mov_b32 v%d, %d\nv_mov_b32 v%d, 0\nv_mov_b32 v%d, 0\nv_mov_b32 v%d, 0\nv_mov_b32 v%d, 0" % (vT + 8, L_CNT, vT + 10, vT + 11, vT + 12, vT + 13))
        a("s_mov_b64 exec, 1")
        a("ds_write_b128 v%d, v[%d:%d]" % (vT + 8, vT + 10, vT + 13))
        a("ds_write_b128 v%d, v[%d:%d] offset:16" % (vT + 8, vT + 10, vT + 13))
        self.exec_all()
        a("s_waitcnt lgkmcnt(0)")
        a("s_barrier")

    def worker(self, normal):
        a = self.a; o = self.o; t = vT
        self.ops = []
        a("s_setprio 3")
        a("s_sub_u32 s%d, s%d, 4" % (sWW, sW))
        PQ = vVD; PD = vVD + 48; WD = vVD + 88; DF = vVD + 84
        NE = o.get("ne", 0) if normal else o.get("ne_l", 8)
        hK = []
        nt = self.nt
        def gl(reg, va, sb, off=0): return self.vm("global_load_dwordx4 v[%d:%d], v%d, s[%d:%d] offset:%d %s" % (reg, reg + 3, va, sb, sb + 1, off, nt))
        if normal:
            a("s_mul_i32 s%d, s%d, 205" % (sCT, sN)); a("s_lshr_b32 s%d, s%d, 10" % (sCT, sCT))
            a("s_mul_i32 s%d, s%d, 5" % (sRB5, sCT)); a("s_sub_u32 s%d, s%d, s%d" % (sRB5, sN, sRB5))
            a("s_cmp_lt_u32 s%d, 40" % sCT)
            a("s_cselect_b32 s%d, s%d, s%d" % (sPB, sWG, sWU)); a("s_cselect_b32 s%d, s%d, s%d" % (sPB + 1, sWG + 1, sWU + 1))
            a("s_cselect_b32 s%d, 32, 40" % sT1)
            a("s_cmp_lt_u32 s%d, 32" % sCT)
            a("s_cselect_b32 s%d, s%d, s%d" % (sPB, sWQ, sPB)); a("s_cselect_b32 s%d, s%d, s%d" % (sPB + 1, sWQ + 1, sPB + 1))
            a("s_cselect_b32 s%d, 0, s%d" % (sT1, sT1))
            a("s_cselect_b32 s%d, 2, 0" % sSTR); a("s_lshl_b32 s%d, 3072, s%d" % (sSTR, sSTR))
            a("s_sub_u32 s%d, s%d, s%d" % (sT1, sCT, sT1)); a("s_mul_i32 s%d, s%d, 384" % (sT1, sT1))
            a("s_lshl_b32 s%d, s%d, 2" % (sT0, sRB5)); a("s_add_u32 s%d, s%d, s%d" % (sT0, sT0, sWW))
            a("s_lshl_b32 s%d, s%d, 5" % (sT0, sT0))
            a("s_mul_i32 s%d, s%d, s%d" % (sT2, sT0, sSTR)); a("s_add_u32 s%d, s%d, s%d" % (sT1, sT1, sT2))
            a("s_add_u32 s%d, s%d, s%d" % (sPB, sPB, sT1)); a("s_addc_u32 s%d, s%d, 0" % (sPB + 1, sPB + 1))
            a("v_mul_u32_u24 v%d, s%d, v%d" % (vX + 8, sSTR, vL8))
            a("v_lshl_add_u32 v%d, v%d, 4, v%d" % (vX + 8, vL7, vX + 8))
            a("s_lshl_b32 s%d, s%d, 3" % (sSTR, sSTR))
            a("v_lshlrev_b32 v%d, 2, v%d" % (t, vL))
            for k in range(5): hx = self.vm("global_load_dword v%d, v%d, s[%d:%d] offset:%d" % (vX + k, t, sX, sX + 1, 256 * k))
            a("v_add_u32 v%d, s%d, v%d" % (t + 1, sT0, vL8)); a("v_lshlrev_b32 v%d, 1, v%d" % (t + 1, t + 1))
            for g in range(4):
                hx = self.vm("global_load_ushort v%d, v%d, s[%d:%d] offset:%d" % (vQF + g, t + 1, sX, sX + 1, 16 * g))
            hlast = None
            for g in range(4):
                if g: a("v_add_u32 v%d, s%d, v%d" % (vX + 8, sSTR, vX + 8))
                for tt in range(3): hlast = gl(PQ + 12 * g + 4 * tt, vX + 8, sPB, 128 * tt)
                if g == 0:
                    self.b0()
                    self.epoch_load()
            a("s_lshl_b32 s%d, s%d, 2" % (sT1, sCG)); a("s_add_u32 s%d, s%d, s%d" % (sT1, sT1, sWW))
            a("s_mul_i32 s%d, s%d, %d" % (sT2, sT1, 16 * 1280)); a("s_lshl_b32 s%d, s%d, 7" % (sT3, sRB))
            a("s_add_u32 s%d, s%d, s%d" % (sT2, sT2, sT3))
            a("s_add_u32 s%d, s%d, s%d" % (sWD, sWD, sT2)); a("s_addc_u32 s%d, s%d, 0" % (sWD + 1, sWD + 1))
            self.stamp(1)
            if o.get("so", 0):
                a("v_mul_u32_u24 v%d, 1280, v%d" % (vX + 10, vL8))
                a("v_lshl_add_u32 v%d, v%d, 4, v%d" % (vX + 10, vL7, vX + 10))
                gl(WD, vX + 10, sWD)
                a("v_add_u32 v%d, %d, v%d" % (vX + 10, 8 * 1280, vX + 10))
                gl(WD + 4, vX + 10, sWD)
                self.wo_base()
                if o.get("so", 0) == 2:
                    a("s_waitcnt vmcnt(0)")
                    for _ in range(7): a("s_sleep 16")
                a("s_setprio %d" % o.get("prio_w", 1))
                for i in range(24): self.kv_load("K", i)
                for i in range(24): self.kv_load("V", i)
                self.stamp(8)
                self.wo_loads()
                a("s_waitcnt vmcnt(0)")
                self.stamp(9)
                return
            self.consts()
            A = [vSC, vSC + 4, vQF + 4, vQF + 8]
            self.layernorm(hx, [(vQF + g, vKD + 80 + g) for g in range(4)])
            for g in range(4): self.build_A(A[g], vKD + 80 + g)
            self.stamp(2)
            self.phaseq(hlast, A, PQ, PD)
            a("v_mul_u32_u24 v%d, 1280, v%d" % (vX + 10, vL8))
            a("v_lshl_add_u32 v%d, v%d, 4, v%d" % (vX + 10, vL7, vX + 10))
            gl(WD, vX + 10, sWD)
            a("v_add_u32 v%d, %d, v%d" % (vX + 10, 8 * 1280, vX + 10))
            gl(WD + 4, vX + 10, sWD)
            self.wo_base()
            hK += [self.kv_load("K", i) for i in range(NE)]
        else:
            hK += [self.kv_load("K", i) for i in range(2)]
            self.b0()
            self.epoch_load()
            hK += [self.kv_load("K", i) for i in range(2, NE)]
            self.stamp(1)
            if o.get("so", 0):
                for i in range(NE, 24): self.kv_load("K", i)
                for i in range(24): self.kv_load("V", i)
                a("s_waitcnt vmcnt(0)")
                self.stamp(9)
                return
            self.consts()
            self.lgkm0()
            self.epoch_finish()
        self.q_addrs(normal)
        for _ in range(o.get("qdelay", 0)): a("s_sleep 16")
        self.q_loads(normal)
        a("s_waitcnt vmcnt(0)")
        self.poll_retry("q", lambda: self.q_check(normal), lambda: self.q_loads(normal), sleep=o.get("qsleep", 2))
        self.stamp(6)
        self.ops = []
        self.q_reduce(normal, WD, DF)
        a("s_setprio %d" % o.get("prio_w", 1))
        KQ = o.get("kq", 10)
        self.dstamp(2)
        hK = [-1] * NE + [self.kv_load("K", i) for i in range(NE, 24)]
        self.dstamp(11)
        hV = [self.kv_load("V", i) for i in range(KQ)]
        self.dstamp(12)
        def W(h):
            if h >= 0: self.wait(h)
        if normal:
            lab = a.newlabel("Lskip_f")
            a("s_cmp_eq_u32 s%d, 4" % sW); a("s_cbranch_scc0 %s" % lab)
            self.f_publish()
            a.label(lab)
        self.await_cnt(1, 4)
        self.read_qf()
        W(hK[11]); self.dstamp(13); self.qk_groups([0, 1, 2, 3])
        hV += [self.kv_load("V", i) for i in range(KQ, KQ + 2)]
        W(hK[23]); self.dstamp(14); self.qk_groups([4, 5, 6, 7])
        hV += [self.kv_load("V", i) for i in range(KQ + 2, KQ + 4)]
        self.softmax()
        self.stamp(8)
        hV += [self.kv_load("V", i) for i in range(KQ + 4, 24)]
        self.dstamp(3)
        if normal and o.get("wo_mode", 1) in (1, 2, 3):
            if o.get("wo_mode", 1) != 3: self.arrive(4)
            if o.get("wo_mode", 1) in (1, 3): self.wo_loads()
        self.dstamp(4)
        self.wg_factor()
        for g in range(8): a("v_mul_f32 v%d, v%d, v%d" % (vSC + g, vFAC, vSC + g))
        self.build_PA()
        for g in range(8):
            self.wait(hV[3 * g + 2]); self.pv_group(g)
        self.stamp(9)
        self.pv_stage(scale=False)

    def run_path(self, normal):
        a = self.a
        tag = "n" if normal else "l"
        a("s_cmp_ge_u32 s%d, 4" % sW)
        a("s_cbranch_scc1 L_worker_%s" % tag)
        self.streamer(normal)
        a("s_branch L_tail_%s" % tag)
        a.label("L_worker_%s" % tag)
        self.worker(normal)
        a.label("L_tail_%s" % tag)
        if self.o.get("so", 0):
            a("s_barrier")
            self.stamp(10)
            a("s_waitcnt lgkmcnt(0)")
            a("s_getreg_b32 s%d, hwreg(HW_REG_XCC_ID)" % sT0)
            a("s_and_b32 s%d, s%d, 15" % (sT0, sT0))
            a("s_add_u32 s%d, s%d, 1" % (sT0, sT0))
            a("s_mul_i32 s%d, s%d, 100" % (sT0, sT0))
            a("s_add_u32 s%d, s%d, s%d" % (sSTAMP + 28, sSTAMP, sT0)); a("s_addc_u32 s%d, s%d, 0" % (sSTAMP + 29, sSTAMP + 1))
            self.write_stamps()
            return
        self.tail_publish_o()
        self.xstamp(1)
        wm = self.o.get("wo_mode", 1)
        if normal and wm == 0: self.wo_loads()
        if normal and wm in (2, 3):
            lab = a.newlabel("Lwo2")
            a("s_cmp_ge_u32 s%d, 4" % sW); a("s_cbranch_scc%d %s" % (0 if wm == 2 else 1, lab))
            self.wo_loads()
            a.label(lab)
        self.xstamp(2)
        if normal: self.hop1_wo()
        else: self.final()
        self.write_stamps()

    def generate(self):
        a = self.a
        self.prologue()
        if self.stamps:
            for k in range(1, 16): a("s_mov_b64 s[%d:%d], 0" % (sSTAMP + 2 * k, sSTAMP + 2 * k + 1))
        a("s_cmp_ge_u32 s%d, 240" % sN)
        a("s_cbranch_scc1 L_light")
        self.run_path(True)
        a("s_endpgm")
        a.label("L_light")
        self.run_path(False)
        a.label("L_end")
        body = a.text()
        lf = self.o.get("ldflag", 0); sf = self.o.get("stflag", 0)
        names = {0: "sc1", 1: "sc0 sc1", 2: "sc1 nt", 3: "sc0 sc1 nt"}
        out = []
        for line in body.split("\n"):
            if line.rstrip().endswith(" sc1") and "global_load" in line: line = line.rstrip()[:-3] + names[lf]
            elif line.rstrip().endswith(" sc1") and "global_store" in line: line = line.rstrip()[:-3] + names[sf]
            out.append(line)
        txt = wrap("\n".join(out), 256, 512, LDS_BYTES, vgpr=256, sgpr=100)
        return txt.replace("    s_endpgm\n.section", "    s_endpgm\nL_codeend:\n.section")

if __name__ == "__main__":
    import argparse
    ap = argparse.ArgumentParser()
    ap.add_argument("-o", default="k.s"); ap.add_argument("--D", type=int, default=3)
    ap.add_argument("--stamps", action="store_true"); ap.add_argument("--nt", default="nt")
    ap.add_argument("--mapping", default="lin"); ap.add_argument("--normp", action="store_true")
    ap.add_argument("--opt", action="append", default=[])
    args = ap.parse_args()
    opts = {}
    for kv in args.opt:
        k, v = kv.split("="); opts[k] = int(v)
    open(args.o, "w").write(Gen(args.D, args.stamps, args.nt, args.mapping, args.normp, opts).generate())
```

```python
import struct, sys
from asmlib import *

def f2u(x): return struct.unpack("<I", struct.pack("<f", x))[0]
SCALE = f2u(192 ** -0.5); LOG2E = f2u(1.4426950408889634); INV640 = f2u(1.0 / 640.0); EPS = f2u(1e-5)

WS_QP = 0x00000; QP_STRIDE = 768
WS_O = 0x80000
WS_OUT2 = 0xB0000; OUT2_STRIDE = 640
WS_EPOCH = 0xE0000
STAMP_OFF = 128 << 20
L_STG = 0
L_Q = 24576
L_F = 25088
L_S = 29184
L_CNT = 33280
L_ML = 33312
LDS_BYTES = 33408
sX, sK, sV, sWQ, sWO, sBX, sWG, sWU, sWD, sOUT, sDBG, sWS = 4, 6, 8, 10, 12, 14, 16, 18, 20, 22, 24, 26
sW = 3
sCG, sRB, sH, sJ = 28, 29, 30, 31
sT0, sT1, sT2, sT3 = 32, 33, 34, 35
sM0 = 36
sSPIN = 44
sMW, sLW, sMG, sLG = 45, 46, 47, 48
sO = 54; sOUT2 = 56
sE, sTAG4 = 58, 59
sWW = 49
sPB = 50
sSTR = 52
sCT, sRB5 = 53, 14
sN = 15
sSTAMP = 60
sSELA, sSELB, sSELC, sTAG = 92, 93, 94, 95
vL, vKO, vL8, vL7, vLDSW, vFF, vFAC = 1, 2, 3, 4, 5, 6, 7
vM = 8; vQF = 12; vSC = 24; vT = 32; vKD = 48; vVD = 144; vX = 240

DPP_ALL = " row_mask:0xf bank_mask:0xf"

class Gen:
    def __init__(self, D=3, stamps=False, nt="nt", mapping="lin", norm_p=False, opts=None):
        self.a = Asm(); self.D = D; self.stamps = stamps; self.nt = nt
        self.mapping = mapping; self.norm_p = norm_p; self.o = opts or {}
        self.ops = []
    def vm(self, text, role=None):
        self.a(text); self.ops.append(role); return len(self.ops) - 1
    def wait(self, h, role=None):
        n = sum(1 for r in self.ops[h + 1:] if r is None or (role is not None and r == role))
        assert n <= 63
        self.a("s_waitcnt vmcnt(%d)" % n)
    def stamp(self, k):
        if self.stamps: self.a("s_memrealtime s[%d:%d]" % (sSTAMP + 2 * k, sSTAMP + 2 * k + 1))
    def dstamp(self, k):
        if self.o.get("diag", 0): self.stamp(k)
    def xstamp(self, k):
        if self.o.get("tdiag", 0): self.stamp(k)
    def tstamp(self, k):
        if not self.o.get("diag", 0): self.stamp(k)
    def lgkm0(self): self.a("s_waitcnt lgkmcnt(0)")
    def exec_set(self, lo, hi): self.a("s_mov_b32 exec_lo, 0x%08x\ns_mov_b32 exec_hi, 0x%08x" % (lo, hi))
    def exec_valid(self): self.exec_set(0x00ff00ff, 0xff00ff00)
    def exec_all(self): self.a("s_mov_b64 exec, -1")
    def allreduce_sgpr(self, v, op, sdst):
        a = self.a
        for m in ("quad_perm:[1,0,3,2]" + DPP_ALL, "quad_perm:[2,3,0,1]" + DPP_ALL, "row_half_mirror" + DPP_ALL, "row_mirror" + DPP_ALL,
                  "row_bcast:15 row_mask:0xa bank_mask:0xf", "row_bcast:31 row_mask:0xc bank_mask:0xf"):
            a("s_nop 1"); a("%s_dpp v%d, v%d, v%d %s" % (op, v, v, v, m))
        a("s_nop 1"); a("v_readlane_b32 s%d, v%d, 63" % (sdst, v)); a("s_nop 1")
    def slots_reduce_sgpr(self, v, op, sdst):
        a = self.a
        for m in ("row_ror:8" + DPP_ALL, "row_bcast:15 row_mask:0xa bank_mask:0xf", "row_bcast:31 row_mask:0xc bank_mask:0xf"):
            a("s_nop 1"); a("%s_dpp v%d, v%d, v%d %s" % (op, v, v, v, m))
        a("s_nop 1"); a("v_readlane_b32 s%d, v%d, 63" % (sdst, v)); a("s_nop 1")
    def reduce8(self, regs, op="v_add_f32"):
        a = self.a
        for m in ("quad_perm:[1,0,3,2]", "quad_perm:[2,3,0,1]", "row_half_mirror"):
            if len(regs) < 3: a("s_nop %d" % (2 - len(regs)))
            for r in regs: a("%s_dpp v%d, v%d, v%d %s%s" % (op, r, r, r, m, DPP_ALL))
    def round_bf16(self, dst, src):
        self.a("v_cvt_pk_bf16_f32 v%d, v%d, v%d" % (dst, src, src))
        self.a("v_and_b32 v%d, 0xffff0000, v%d" % (dst, dst))
    def build_A(self, d, src):
        a = self.a
        a("v_cvt_pk_bf16_f32 v%d, v%d, v%d" % (d + 3, src, src))
        for v in range(3): a("v_and_b32 v%d, v%d, v%d" % (d + v, d + 3, vM + v))
        a("v_and_b32 v%d, v%d, v%d" % (d + 3, d + 3, vM + 3))
    def silu(self, dst, src, t):
        a = self.a
        a("v_mul_f32 v%d, 0x%08x, v%d" % (t, LOG2E ^ 0x80000000, src))
        a("v_exp_f32 v%d, v%d" % (t, t)); a("s_nop 0")
        a("v_add_f32 v%d, 1.0, v%d" % (t, t))
        a("v_rcp_f32 v%d, v%d" % (t, t)); a("s_nop 0")
        a("v_mul_f32 v%d, v%d, v%d" % (dst, src, t))
    def pk_add(self, d, x, y):
        self.a("v_pk_add_f32 v[%d:%d], v[%d:%d], v[%d:%d]" % (d, d + 1, x, x + 1, y, y + 1))
    def tagit(self, regs):
        for r in regs: self.a("v_bfi_b32 v%d, v%d, s%d, v%d" % (r, vFF, sTAG, r))
    def untag(self, regs):
        for r in regs: self.a("v_and_b32 v%d, 0xffffff00, v%d" % (r, r))
    def gather_tags(self, dst, r):
        a = self.a
        a("v_perm_b32 v%d, v%d, v%d, s%d" % (dst, r + 1, r, sSELA))
        a("v_perm_b32 v%d, v%d, v%d, s%d" % (dst, r + 2, dst, sSELB))
        a("v_perm_b32 v%d, v%d, v%d, s%d" % (dst, r + 3, dst, sSELC))
    def check_tags(self, granules, t):
        a = self.a
        self.gather_tags(t, granules[0])
        if len(granules) == 1:
            a("v_cmp_ne_u32 vcc, s%d, v%d" % (sTAG4, t)); return
        a("v_xor_b32 v%d, s%d, v%d" % (t, sTAG4, t))
        for r in granules[1:]:
            self.gather_tags(t + 1, r)
            a("v_xor_b32 v%d, s%d, v%d" % (t + 1, sTAG4, t + 1))
            a("v_or_b32 v%d, v%d, v%d" % (t, t, t + 1))
        a("v_cmp_ne_u32 vcc, 0, v%d" % t)
    def poll_retry(self, name, check_fn, reload_fn, sleep=2, masked=False):
        a = self.a
        ok = a.newlabel("Lok_" + name); re_ = a.newlabel("Lre_" + name)
        check_fn()
        a("s_cbranch_vccz %s" % ok)
        a.label(re_)
        a("s_add_u32 s%d, s%d, 1" % (sSPIN, sSPIN))
        a("s_cmp_gt_u32 s%d, 200000" % sSPIN)
        a("s_cbranch_scc1 %s" % ok)
        if sleep: a("s_sleep %d" % sleep)
        if masked: a("s_mov_b64 exec, vcc")
        reload_fn()
        if masked: self.exec_all()
        a("s_waitcnt vmcnt(0)")
        check_fn()
        a("s_cbranch_vccnz %s" % re_)
        a.label(ok)
    def poll_pipe(self, name, check_fn, load_fn, half_rtt=8, nload=1):
        a = self.a
        ok = a.newlabel("Lok_" + name); lp = a.newlabel("Llp_" + name)
        check_fn()
        a("s_cbranch_vccz %s" % ok)
        a("s_mov_b64 exec, vcc"); load_fn(); self.exec_all()
        a("s_sleep %d" % half_rtt)
        a.label(lp)
        a("s_add_u32 s%d, s%d, 1" % (sSPIN, sSPIN))
        a("s_cmp_gt_u32 s%d, 400000" % sSPIN)
        a("s_cbranch_scc1 %s" % ok)
        a("s_mov_b64 exec, vcc"); load_fn(); self.exec_all()
        a("s_waitcnt vmcnt(%d)" % nload)
        check_fn()
        a("s_cbranch_vccnz %s" % lp)
        a.label(ok)
    def prologue(self):
        a = self.a
        a("s_load_dwordx16 s[4:19], s[0:1], 0")
        a("s_load_dwordx8 s[20:27], s[0:1], 64")
        self.stamp(0)
        if self.o.get("dbgtime", 0): a("s_memrealtime s[96:97]")
        a("s_cmp_ge_u32 s2, 256")
        a("s_cbranch_scc1 L_end")
        a("v_lshrrev_b32 v%d, 6, v0" % vT)
        a("v_and_b32 v%d, 63, v0" % vL)
        a("v_readfirstlane_b32 s%d, v%d" % (sW, vT))
        a("v_lshrrev_b32 v%d, 3, v%d" % (vL8, vL))
        a("v_and_b32 v%d, 7, v%d" % (vL7, vL))
        a("v_mul_u32_u24 v%d, 384, v%d" % (vKO, vL8))
        a("v_lshl_add_u32 v%d, v%d, 4, v%d" % (vKO, vL7, vKO))
        if self.mapping == "lin":
            a("s_mov_b32 s%d, s2" % sT3)
        else:
            a("s_and_b32 s%d, s2, 7" % sT0); a("s_lshr_b32 s%d, s2, 3" % sT1)
            a("s_and_b32 s%d, s%d, 3" % (sT2, sT1)); a("s_lshl_b32 s%d, s%d, 2" % (sT0, sT0))
            a("s_add_u32 s%d, s%d, s%d" % (sT0, sT0, sT2)); a("s_lshr_b32 s%d, s%d, 2" % (sT1, sT1))
            a("s_lshl_b32 s%d, s%d, 3" % (sT0, sT0)); a("s_add_u32 s%d, s%d, s%d" % (sT3, sT0, sT1))
        a("s_lshr_b32 s%d, s%d, 3" % (sH, sT3))
        a("s_and_b32 s%d, s%d, 7" % (sJ, sT3))
        if self.o.get("kvint", 0) == 1:
            a("s_lshl_b32 s%d, s%d, 3" % (sT0, sJ)); a("s_add_u32 s%d, s%d, s%d" % (sT0, sT0, sW))
            a("s_mul_i32 s%d, s%d, 3072" % (sT0, sT0))
            a("s_mul_i32 s%d, s%d, 1572864" % (sT1, sH)); a("s_add_u32 s%d, s%d, s%d" % (sT0, sT0, sT1))
        elif self.o.get("kvint", 0) == 2:
            a("s_mul_i32 s%d, s%d, 196608" % (sT0, sT3))
            a("s_mul_i32 s%d, s%d, 3072" % (sT1, sW)); a("s_add_u32 s%d, s%d, s%d" % (sT0, sT0, sT1))
        else:
            a("s_lshl_b32 s%d, s%d, 3" % (sT0, sT3))
            a("s_add_u32 s%d, s%d, s%d" % (sT0, sT0, sW))
            a("s_mul_i32 s%d, s%d, 24576" % (sT0, sT0))
        if self.o.get("lightodd", 1):
            a("s_sub_u32 s%d, s2, 224" % sT1)
            a("s_lshr_b32 s%d, s%d, 1" % (sT2, sT1))
            a("s_and_b32 s%d, s%d, 1" % (sT1, sT1)); a("s_lshl_b32 s%d, s%d, 4" % (sT1, sT1))
            a("s_add_u32 s%d, s%d, s%d" % (sT2, sT2, sT1)); a("s_add_u32 s%d, s%d, 224" % (sT2, sT2))
            a("s_cmp_lt_u32 s2, 224")
            a("s_cselect_b32 s48, s2, s%d" % sT2)
        else:
            a("s_mov_b32 s48, s2")
        a("s_mul_i32 s%d, s48, 205" % sCG)
        a("s_lshr_b32 s%d, s%d, 11" % (sCG, sCG))
        a("s_mul_i32 s%d, s%d, 10" % (sRB, sCG))
        a("s_sub_u32 s%d, s48, s%d" % (sRB, sRB))
        a("s_mov_b32 s%d, 0" % sSPIN)
        a("s_waitcnt lgkmcnt(0)")
        a("s_mov_b32 s%d, s48" % sN)
        a("s_add_u32 s%d, s%d, s%d" % (sK, sK, sT0)); a("s_addc_u32 s%d, s%d, 0" % (sK + 1, sK + 1))
        a("s_add_u32 s%d, s%d, s%d" % (sV, sV, sT0)); a("s_addc_u32 s%d, s%d, 0" % (sV + 1, sV + 1))
    def kv_load(self, which, i):
        a = self.a
        base = sK if which == "K" else sV
        reg = (vKD if which == "K" else vVD) + 4 * i
        grp, t = divmod(i, 3)
        ki = self.o.get("kvint", 0)
        if ki:
            if grp > 0 and t == 0:
                a("s_add_u32 s%d, s%d, %d" % (base, base, 196608 if ki == 1 else 24576)); a("s_addc_u32 s%d, s%d, 0" % (base + 1, base + 1))
            off = t * 128
        else:
            if grp > 0 and grp % 2 == 0 and t == 0:
                a("s_add_u32 s%d, s%d, 6144" % (base, base)); a("s_addc_u32 s%d, s%d, 0" % (base + 1, base + 1))
            off = (grp % 2) * 3072 + t * 128
        return self.vm("global_load_dwordx4 v[%d:%d], v%d, s[%d:%d] offset:%d %s" % (reg, reg + 3, vKO, base, base + 1, off, self.nt))
    def consts(self):
        a = self.a
        a("v_and_b32 v%d, 1, v%d" % (vT, vL))
        a("v_lshlrev_b32 v%d, 4, v%d" % (vT, vT))
        a("v_mov_b32 v%d, 0xffff" % (vT + 1))
        a("v_lshlrev_b32 v%d, v%d, v%d" % (vT + 1, vT, vT + 1))
        a("v_bfe_u32 v%d, v%d, 1, 2" % (vT + 2, vL))
        for v in range(4): a("v_cmp_eq_u32 s[%d:%d], %d, v%d" % (sM0 + 2 * v, sM0 + 2 * v + 1, v, vT + 2))
        a("s_nop 0")
        for v in range(4): a("v_cndmask_b32 v%d, 0, v%d, s[%d:%d]" % (vM + v, vT + 1, sM0 + 2 * v, sM0 + 2 * v + 1))
        a("v_bfe_u32 v%d, v%d, 4, 1" % (vT, vL))
        a("v_lshlrev_b32 v%d, 4, v%d" % (vT, vT))
        a("v_lshl_add_u32 v%d, v%d, 5, v%d" % (vLDSW, vL7, vT))
        a("v_mov_b32 v%d, 0xff" % vFF)
        a("s_mov_b32 s%d, 0x0c0c0400" % sSELA)
        a("s_mov_b32 s%d, 0x0c040100" % sSELB)
        a("s_mov_b32 s%d, 0x04020100" % sSELC)
        a("s_add_u32 s%d, s%d, 0x%x" % (sO, sWS, WS_O)); a("s_addc_u32 s%d, s%d, 0" % (sO + 1, sWS + 1))
        a("s_add_u32 s%d, s%d, 0x%x" % (sOUT2, sWS, WS_OUT2)); a("s_addc_u32 s%d, s%d, 0" % (sOUT2 + 1, sWS + 1))
    def epoch_load(self):
        self.a("s_load_dword s%d, s[%d:%d], 0x%x" % (sE, sWS, sWS + 1, WS_EPOCH))
    def epoch_finish(self):
        a = self.a
        a("s_add_u32 s%d, s%d, 1" % (sE, sE))
        a("s_and_b32 s%d, s%d, 0xff" % (sTAG, sE))
        a("s_mul_i32 s%d, s%d, 0x01010101" % (sTAG4, sTAG))
    def tile_addr(self, dst, stride, base, colshift=0, sw=None):
        a = self.a
        a("v_lshrrev_b32 v%d, 5, v%d" % (dst, vL))
        a("s_lshl_b32 s%d, s%d, 1" % (sT0, sW if sw is None else sw))
        a("v_add_u32 v%d, s%d, v%d" % (dst, sT0, dst))
        a("v_mul_u32_u24 v%d, %d, v%d" % (dst, stride, dst))
        if colshift: a("v_lshl_add_u32 v%d, v%d, %d, v%d" % (dst, vLDSW, colshift, dst))
        else: a("v_add_u32 v%d, v%d, v%d" % (dst, dst, vLDSW))
        if base: a("v_add_u32 v%d, %d, v%d" % (dst, base, dst))
    def code_prefetch(self, dst):
        a = self.a
        a("s_getpc_b64 s[%d:%d]" % (sT0, sT1))
        lab = a.newlabel("Lpc"); a.label(lab)
        a("s_sub_u32 s%d, s%d, %s-%s" % (sT0, sT0, lab, KNAME))
        a("s_subb_u32 s%d, s%d, 0" % (sT1, sT1))
        a("s_lshr_b32 s%d, s2, 3" % sT2); a("s_and_b32 s%d, s%d, 7" % (sT2, sT2))
        a("s_lshl_b32 s%d, s%d, 2" % (sT2, sT2)); a("s_add_u32 s%d, s%d, s%d" % (sT2, sT2, sW))
        a("s_lshl_b32 s%d, s%d, 10" % (sT2, sT2))
        a("v_lshl_add_u32 v%d, v%d, 4, s%d" % (vT, vL, sT2))
        a("v_min_u32 v%d, L_codeend-%s-16, v%d" % (vT, KNAME, vT))
        return self.vm("global_load_dwordx4 v[%d:%d], v%d, s[%d:%d]" % (dst, dst + 3, vT, sT0, sT1))
    def layernorm(self, hx, own):
        a = self.a; t = vT
        self.wait(hx)
        u = vX + 6
        for k in range(5):
            a("v_lshlrev_b32 v%d, 16, v%d" % (u + 2 * k, vX + k))
            a("v_and_b32 v%d, 0xffff0000, v%d" % (u + 2 * k + 1, vX + k))
        a("v_add_f32 v%d, v%d, v%d" % (t, u, u + 1))
        for k in range(2, 10): a("v_add_f32 v%d, v%d, v%d" % (t, t, u + k))
        self.allreduce_sgpr(t, "v_add_f32", sT0)
        a("v_mov_b32 v%d, 0x%08x" % (t + 1, INV640))
        a("v_mul_f32 v%d, s%d, v%d" % (t + 2, sT0, t + 1))
        a("v_sub_f32 v%d, v%d, v%d" % (u, u, t + 2))
        a("v_mul_f32 v%d, v%d, v%d" % (t, u, u))
        for k in range(1, 10):
            a("v_sub_f32 v%d, v%d, v%d" % (u + k, u + k, t + 2))
            a("v_fmac_f32 v%d, v%d, v%d" % (t, u + k, u + k))
        self.allreduce_sgpr(t, "v_add_f32", sT0)
        a("v_mul_f32 v%d, s%d, v%d" % (t + 3, sT0, t + 1))
        self.round_bf16(t + 2, t + 2)
        self.round_bf16(t + 3, t + 3)
        a("v_add_f32 v%d, 0x%08x, v%d" % (t + 3, EPS, t + 3))
        self.round_bf16(t + 3, t + 3)
        a("v_sqrt_f32 v%d, v%d" % (t + 3, t + 3)); a("s_nop 0")
        self.round_bf16(t + 3, t + 3)
        a("v_rcp_f32 v%d, v%d" % (t + 5, t + 3))
        for src, dst in own:
            a("v_lshlrev_b32 v%d, 16, v%d" % (t + 4, src))
            a("v_sub_f32 v%d, v%d, v%d" % (t + 4, t + 4, t + 2))
            self.round_bf16(t + 4, t + 4)
            a("v_mul_f32 v%d, v%d, v%d" % (t + 6, t + 4, t + 5))
            a("v_fma_f32 v%d, -v%d, v%d, v%d" % (t + 7, t + 6, t + 3, t + 4))
            a("v_fma_f32 v%d, v%d, v%d, v%d" % (dst, t + 7, t + 5, t + 6))

    def arrive(self, c):
        a = self.a
        self.lgkm0()
        a("v_mov_b32 v%d, %d" % (vT + 14, L_CNT + 4 * c)); a("v_mov_b32 v%d, 1" % (vT + 15))
        a("s_mov_b64 exec, 1")
        a("ds_add_u32 v%d, v%d" % (vT + 14, vT + 15))
        self.exec_all()
    def await_cnt(self, c, target):
        a = self.a
        lp = a.newlabel("Lcw"); ok = a.newlabel("Lcok")
        a("v_mov_b32 v%d, %d" % (vT + 14, L_CNT + 4 * c))
        a.label(lp)
        a("ds_read_b32 v%d, v%d" % (vT + 15, vT + 14))
        self.lgkm0()
        a("v_readfirstlane_b32 s%d, v%d" % (sT0, vT + 15))
        a("s_add_u32 s%d, s%d, 1" % (sSPIN, sSPIN))
        a("s_cmp_ge_u32 s%d, %d" % (sT0, target))
        a("s_cbranch_scc1 %s" % ok)
        a("s_cmp_gt_u32 s%d, 4000000" % sSPIN)
        a("s_cbranch_scc1 %s" % ok)
        a("s_sleep 1")
        a("s_branch %s" % lp)
        a.label(ok)

    def phaseq(self, hlast, A, PQ, PD):
        a = self.a; t = vT
        self.wait(hlast)
        self.stamp(3)
        for g in range(4):
            for tt in range(3):
                c = "0" if g == 0 else "v[%d:%d]" % (PD + 4 * tt, PD + 4 * tt + 3)
                B = PQ + 12 * g + 4 * tt
                a("v_mfma_f32_16x16x32_bf16 v[%d:%d], v[%d:%d], v[%d:%d], %s" % (PD + 4 * tt, PD + 4 * tt + 3, A[g], A[g] + 3, B, B + 3, c))
        self.tile_addr(t, 768, L_STG, sw=sWW)
        a("v_and_b32 v%d, 3, v%d" % (t + 2, vL)); a("v_mul_u32_u24 v%d, 1536, v%d" % (t + 2, t + 2))
        a("v_lshrrev_b32 v%d, 2, v%d" % (t + 6, vL)); a("v_min_u32 v%d, 11, v%d" % (t + 6, t + 6))
        a("s_mul_i32 s%d, s%d, 12" % (sT1, sWW)); a("v_add_u32 v%d, s%d, v%d" % (t + 6, sT1, t + 6))
        a("v_lshl_add_u32 v%d, v%d, 4, v%d" % (t + 3, t + 6, t + 2))
        a("s_mul_i32 s%d, s%d, %d" % (sT1, sN, QP_STRIDE))
        a("v_lshl_add_u32 v%d, v%d, 4, s%d" % (t + 5, t + 6, sT1))
        self.exec_valid()
        for tt in range(3): a("ds_write_b128 v%d, v[%d:%d] offset:%d" % (t, PD + 4 * tt, PD + 4 * tt + 3, 256 * tt))
        self.exec_all()
        self.arrive(0)
        self.epoch_finish()
        self.await_cnt(0, 4)
        self.stamp(4)
        R = PD
        a("ds_read_b128 v[%d:%d], v%d offset:%d" % (R, R + 3, t + 3, L_STG))
        a("ds_read_b128 v[%d:%d], v%d offset:%d" % (R + 4, R + 7, t + 3, L_STG + 768))
        self.lgkm0()
        self.pk_add(R, R, R + 4); self.pk_add(R + 2, R + 2, R + 6)
        a("s_nop 1")
        for m in ("quad_perm:[1,0,3,2]", "quad_perm:[2,3,0,1]"):
            for r in (R, R + 1, R + 2, R + 3): a("v_add_f32_dpp v%d, v%d, v%d %s%s" % (r, r, r, m, DPP_ALL))
        self.tagit([R, R + 1, R + 2, R + 3])
        self.exec_set(0x11111111, 0x00001111)
        self.vm("global_store_dwordx4 v%d, v[%d:%d], s[%d:%d] sc1" % (t + 5, R, R + 3, sWS, sWS + 1))
        self.exec_all()
        self.stamp(5)

    GQ = vVD
    GU = vVD + 8
    GA = vVD + 32
    def q_addrs(self, normal):
        a = self.a; t = vT; GA = self.GA
        a("s_mul_i32 s%d, s%d, %d" % (sT0, sH, 5 * QP_STRIDE)); a("s_mul_i32 s%d, s%d, 192" % (sT1, sWW))
        a("s_add_u32 s%d, s%d, s%d" % (sT0, sT0, sT1))
        a("v_min_u32 v%d, 4, v%d" % (t + 1, vL7))
        a("v_mul_u32_u24 v%d, %d, v%d" % (t + 1, QP_STRIDE, t + 1))
        a("v_lshl_add_u32 v%d, v%d, 4, v%d" % (t + 2, vL8, t + 1))
        a("v_add_u32 v%d, s%d, v%d" % (GA, sT0, t + 2))
        if normal:
            a("s_mul_i32 s%d, s%d, 171" % (sT0, sCG)); a("s_lshr_b32 s%d, s%d, 9" % (sT0, sT0))
            a("s_mul_i32 s%d, s%d, 3" % (sT1, sT0)); a("s_sub_u32 s%d, s%d, s%d" % (sT1, sCG, sT1))
            a("s_add_u32 s%d, s%d, 32" % (sT0, sT0)); a("s_mul_i32 s%d, s%d, %d" % (sT0, sT0, 5 * QP_STRIDE))
            a("s_lshl_b32 s%d, s%d, 8" % (sT1, sT1)); a("s_add_u32 s%d, s%d, s%d" % (sT0, sT0, sT1))
            a("s_lshl_b32 s%d, s%d, 6" % (sT1, sWW)); a("s_add_u32 s%d, s%d, s%d" % (sT0, sT0, sT1))
            a("v_lshrrev_b32 v%d, 2, v%d" % (t + 2, vL8))
            a("v_lshl_add_u32 v%d, v%d, 4, v%d" % (t + 2, t + 2, t + 1))
            a("v_add_u32 v%d, s%d, v%d" % (GA + 1, sT0, t + 2))
            a("v_add_u32 v%d, %d, v%d" % (GA + 2, 40 * QP_STRIDE, GA + 1))
    def q_loads(self, normal):
        a = self.a; GQ, GU, GA = self.GQ, self.GU, self.GA
        for k in range(8): a("v_mov_b32 v%d, s%d" % (GQ + k, sTAG))
        if normal:
            for k in range(16): a("v_mov_b32 v%d, s%d" % (GU + k, sTAG))
        self.exec_set(0x1f1f1f1f, 0x1f1f1f1f)
        a("global_load_dwordx4 v[%d:%d], v%d, s[%d:%d] sc1" % (GQ, GQ + 3, GA, sWS, sWS + 1))
        if normal:
            a("global_load_dwordx4 v[%d:%d], v%d, s[%d:%d] sc1" % (GU, GU + 3, GA + 1, sWS, sWS + 1))
            a("global_load_dwordx4 v[%d:%d], v%d, s[%d:%d] offset:32 sc1" % (GU + 4, GU + 7, GA + 1, sWS, sWS + 1))
            a("global_load_dwordx4 v[%d:%d], v%d, s[%d:%d] sc1" % (GU + 8, GU + 11, GA + 2, sWS, sWS + 1))
            a("global_load_dwordx4 v[%d:%d], v%d, s[%d:%d] offset:32 sc1" % (GU + 12, GU + 15, GA + 2, sWS, sWS + 1))
        a("s_mov_b32 exec_hi, 0")
        a("global_load_dwordx4 v[%d:%d], v%d, s[%d:%d] offset:128 sc1" % (GQ + 4, GQ + 7, GA, sWS, sWS + 1))
        self.exec_all()
    def q_check(self, normal):
        g = [self.GQ, self.GQ + 4]
        if normal: g += [self.GU, self.GU + 4, self.GU + 8, self.GU + 12]
        self.check_tags(g, vT)
    def q_reduce(self, normal, WD, DF):
        a = self.a; t = vT; GQ, GU = self.GQ, self.GU
        regs = [GQ + k for k in range(8)]
        self.untag(regs)
        self.reduce8(regs)
        for i in range(2):
            a("v_cvt_pk_bf16_f32 v%d, v%d, v%d" % (t + 2 * i, GQ + 4 * i, GQ + 4 * i + 1))
            a("v_cvt_pk_bf16_f32 v%d, v%d, v%d" % (t + 2 * i + 1, GQ + 4 * i + 2, GQ + 4 * i + 3))
        a("s_mul_i32 s%d, s%d, 96" % (sT0, sWW)); a("s_add_u32 s%d, s%d, %d" % (sT0, sT0, L_Q))
        a("v_lshl_add_u32 v%d, v%d, 3, s%d" % (t + 6, vL8, sT0))
        self.exec_set(0x01010101, 0x01010101)
        a("ds_write_b64 v%d, v[%d:%d]" % (t + 6, t, t + 1))
        a("s_mov_b32 exec_hi, 0")
        a("ds_write_b64 v%d, v[%d:%d] offset:64" % (t + 6, t + 2, t + 3))
        self.exec_all()
        self.arrive(1)
        self.stamp(7)
        if normal:
            a("v_and_b32 v%d, 3, v%d" % (t, vL8))
            for k in (1, 2, 3): a("v_cmp_eq_u32 s[%d:%d], %d, v%d" % (sM0 + 2 * k, sM0 + 2 * k + 1, k, t))
            a("s_nop 0")
            for q in range(4):
                for k in (1, 2, 3):
                    a("v_cndmask_b32 v%d, v%d, v%d, s[%d:%d]" % (GU + 4 * q, GU + 4 * q, GU + 4 * q + k, sM0 + 2 * k, sM0 + 2 * k + 1))
            sel = [GU, GU + 4, GU + 8, GU + 12]
            self.untag(sel)
            self.reduce8(sel)
            for g, u in ((GU, GU + 8), (GU + 4, GU + 12)):
                self.round_bf16(g, g); self.round_bf16(u, u)
                self.silu(g, g, t + 3)
                self.round_bf16(g, g)
                a("v_mul_f32 v%d, v%d, v%d" % (g, g, u))
            A0, A1 = t + 4, t + 8
            self.build_A(A0, GU); self.build_A(A1, GU + 4)
            a("s_nop 1")
            a("v_mfma_f32_16x16x32_bf16 v[%d:%d], v[%d:%d], v[%d:%d], 0" % (DF, DF + 3, A0, A0 + 3, WD, WD + 3))
            a("v_mfma_f32_16x16x32_bf16 v[%d:%d], v[%d:%d], v[%d:%d], v[%d:%d]" % (DF, DF + 3, A1, A1 + 3, WD + 4, WD + 7, DF, DF + 3))
            self.tile_addr(t + 12, 256, L_F, sw=sWW)
            a("s_nop 4")
            self.exec_valid()
            a("ds_write_b128 v%d, v[%d:%d]" % (t + 12, DF, DF + 3))
            self.exec_all()
            self.arrive(2)
    def f_publish(self):
        a = self.a; t = vT; R = vX
        self.await_cnt(2, 4)
        a("v_and_b32 v%d, 3, v%d" % (t, vL)); a("v_lshlrev_b32 v%d, 9, v%d" % (t, t))
        a("v_lshrrev_b32 v%d, 2, v%d" % (t + 1, vL))
        a("v_lshl_add_u32 v%d, v%d, 4, v%d" % (t, t + 1, t))
        a("ds_read_b128 v[%d:%d], v%d offset:%d" % (R, R + 3, t, L_F))
        a("ds_read_b128 v[%d:%d], v%d offset:%d" % (R + 4, R + 7, t, L_F + 256))
        a("s_mul_i32 s%d, s%d, %d" % (sT3, sN, OUT2_STRIDE)); a("s_add_u32 s%d, s%d, 384" % (sT3, sT3))
        a("v_lshlrev_b32 v%d, 4, v%d" % (t + 1, t + 1)); a("v_add_u32 v%d, s%d, v%d" % (t + 1, sT3, t + 1))
        self.lgkm0()
        self.pk_add(R, R, R + 4); self.pk_add(R + 2, R + 2, R + 6)
        a("s_nop 1")
        for m in ("quad_perm:[1,0,3,2]", "quad_perm:[2,3,0,1]"):
            for k in range(4): a("v_add_f32_dpp v%d, v%d, v%d %s%s" % (R + k, R + k, R + k, m, DPP_ALL))
        self.tagit([R, R + 1, R + 2, R + 3])
        self.exec_set(0x11111111, 0x11111111)
        self.vm("global_store_dwordx4 v%d, v[%d:%d], s[%d:%d] sc1" % (t + 1, R, R + 3, sOUT2, sOUT2 + 1), "w4")
        self.exec_all()
    def read_qf(self):
        a = self.a
        a("v_lshlrev_b32 v%d, 4, v%d" % (vT, vL7))
        for t in range(3): a("ds_read_b128 v[%d:%d], v%d offset:%d" % (vQF + 4 * t, vQF + 4 * t + 3, vT, L_Q + 128 * t))
        self.lgkm0()
    def qk_groups(self, groups):
        a = self.a
        for t in range(3):
            for v in range(4):
                for g in groups:
                    k = vKD + 12 * g + 4 * t + v
                    src2 = "0" if (t == 0 and v == 0) else "v%d" % (vSC + g)
                    a("v_dot2_f32_bf16 v%d, v%d, v%d, %s" % (vSC + g, k, vQF + 4 * t + v, src2))
    def softmax(self):
        a = self.a; t = vT
        a("s_nop 2")
        self.reduce8([vSC + g for g in range(8)])
        a("s_mov_b32 s%d, 0x%08x" % (sT0, SCALE))
        for g in range(0, 8, 2):
            a("v_cvt_pk_bf16_f32 v%d, v%d, v%d" % (t, vSC + g, vSC + g + 1))
            a("v_lshlrev_b32 v%d, 16, v%d" % (vSC + g, t))
            a("v_and_b32 v%d, 0xffff0000, v%d" % (vSC + g + 1, t))
            a("v_mul_f32 v%d, s%d, v%d" % (vSC + g, sT0, vSC + g))
            a("v_mul_f32 v%d, s%d, v%d" % (vSC + g + 1, sT0, vSC + g + 1))
            a("v_cvt_pk_bf16_f32 v%d, v%d, v%d" % (t, vSC + g, vSC + g + 1))
            a("v_lshlrev_b32 v%d, 16, v%d" % (vSC + g, t))
            a("v_and_b32 v%d, 0xffff0000, v%d" % (vSC + g + 1, t))
        a("v_max3_f32 v%d, v%d, v%d, v%d" % (t, vSC, vSC + 1, vSC + 2))
        a("v_max3_f32 v%d, v%d, v%d, v%d" % (t + 1, vSC + 3, vSC + 4, vSC + 5))
        a("v_max3_f32 v%d, v%d, v%d, v%d" % (t, t, vSC + 6, vSC + 7))
        a("v_max_f32 v%d, v%d, v%d" % (t, t, t + 1))
        self.slots_reduce_sgpr(t, "v_max_f32", sMW)
        a("s_mov_b32 s%d, 0x%08x" % (sT0, LOG2E))
        for g in range(8):
            a("v_subrev_f32 v%d, s%d, v%d" % (vSC + g, sMW, vSC + g))
            a("v_mul_f32 v%d, s%d, v%d" % (vSC + g, sT0, vSC + g))
            a("v_exp_f32 v%d, v%d" % (vSC + g, vSC + g))
        a("s_nop 0")
        a("v_add_f32 v%d, v%d, v%d" % (t, vSC, vSC + 1)); a("v_add_f32 v%d, v%d, v%d" % (t + 1, vSC + 2, vSC + 3))
        a("v_add_f32 v%d, v%d, v%d" % (t + 2, vSC + 4, vSC + 5)); a("v_add_f32 v%d, v%d, v%d" % (t + 3, vSC + 6, vSC + 7))
        a("v_add_f32 v%d, v%d, v%d" % (t, t, t + 1)); a("v_add_f32 v%d, v%d, v%d" % (t + 2, t + 2, t + 3))
        a("v_add_f32 v%d, v%d, v%d" % (t, t, t + 2))
        self.slots_reduce_sgpr(t, "v_add_f32", sLW)
        a("s_lshl_b32 s%d, s%d, 3" % (sT0, sW)); a("s_add_u32 s%d, s%d, %d" % (sT0, sT0, L_ML))
        a("v_mov_b32 v%d, s%d" % (t, sT0))
        a("v_mov_b32 v%d, s%d" % (t + 2, sMW)); a("v_mov_b32 v%d, s%d" % (t + 3, sLW))
        a("s_mov_b64 exec, 1")
        a("ds_write_b64 v%d, v[%d:%d]" % (t, t + 2, t + 3))
        self.exec_all()
        self.arrive(3)
    def build_PA(self):
        for g in range(8): self.build_A(vKD + 4 * g, vSC + g)
    def pv_group(self, g):
        DA = vKD + 32
        for t in range(3):
            B = vVD + 12 * g + 4 * t
            c = "0" if g == 0 else "v[%d:%d]" % (DA + 4 * t, DA + 4 * t + 3)
            self.a("v_mfma_f32_16x16x32_bf16 v[%d:%d], v[%d:%d], v[%d:%d], %s" % (DA + 4 * t, DA + 4 * t + 3, vKD + 4 * g, vKD + 4 * g + 3, B, B + 3, c))
    def wg_factor(self):
        a = self.a; t = vT
        self.await_cnt(3, 8)
        a("v_lshlrev_b32 v%d, 3, v%d" % (t, vL7))
        a("ds_read_b64 v[%d:%d], v%d offset:%d" % (t + 2, t + 3, t, L_ML))
        self.lgkm0()
        a("v_mov_b32 v%d, v%d" % (t + 4, t + 2))
        a("s_nop 1")
        self.reduce8([t + 4], "v_max_f32")
        a("s_mov_b32 s%d, 0x%08x" % (sT0, LOG2E))
        a("v_sub_f32 v%d, s%d, v%d" % (vFAC, sMW, t + 4))
        a("v_mul_f32 v%d, s%d, v%d" % (vFAC, sT0, vFAC))
        a("v_exp_f32 v%d, v%d" % (vFAC, vFAC))
        lab = a.newlabel("Lskip_ml")
        a("s_cmp_eq_u32 s%d, 0" % sW); a("s_cbranch_scc0 %s" % lab)
        a("v_sub_f32 v%d, v%d, v%d" % (t + 5, t + 2, t + 4))
        a("v_mul_f32 v%d, s%d, v%d" % (t + 5, sT0, t + 5))
        a("v_exp_f32 v%d, v%d" % (t + 5, t + 5)); a("s_nop 0")
        a("v_mul_f32 v%d, v%d, v%d" % (t + 5, t + 5, t + 3))
        a("s_nop 1")
        self.reduce8([t + 5])
        a("v_mov_b32 v%d, v%d\nv_mov_b32 v%d, v%d" % (t + 6, t + 4, t + 7, t + 5))
        self.tagit([t + 4, t + 5, t + 6, t + 7])
        a("s_mul_i32 s%d, s2, %d" % (sT1, OUT2_STRIDE)); a("v_mov_b32 v%d, s%d" % (t, sT1))
        a("s_mov_b64 exec, 1")
        self.vm("global_store_dwordx4 v%d, v[%d:%d], s[%d:%d] sc1" % (t, t + 4, t + 7, sOUT2, sOUT2 + 1), "w0")
        self.exec_all()
        a.label(lab)
    def pv_stage(self, scale=True):
        a = self.a; t = vT; DA = vKD + 32
        self.tile_addr(t, 768, L_STG)
        a("s_nop 3")
        if scale:
            for k in range(12): a("v_mul_f32 v%d, v%d, v%d" % (DA + k, vFAC, DA + k))
        self.exec_valid()
        for tt in range(3): a("ds_write_b128 v%d, v[%d:%d] offset:%d" % (t, DA + 4 * tt, DA + 4 * tt + 3, 256 * tt))
        self.exec_all()
    def wo_loads(self):
        a = self.a; WO = vKD + 48
        a("v_mul_u32_u24 v%d, 5120, v%d" % (vX + 13, vL8))
        a("v_lshl_add_u32 v%d, v%d, 4, v%d" % (vX + 13, vL7, vX + 13))
        for r in range(4):
            self.vm("global_load_dwordx4 v[%d:%d], v%d, s[%d:%d] offset:%d %s" % (WO + 4 * r, WO + 4 * r + 3, vX + 13, sWO, sWO + 1, 1280 * r, self.nt))
    def wo_base(self):
        a = self.a
        a("s_lshl_b32 s%d, s%d, 3" % (sT1, sCG)); a("s_add_u32 s%d, s%d, s%d" % (sT1, sT1, sW))
        a("s_lshl_b32 s%d, s%d, 7" % (sT3, sRB))
        a("s_mul_i32 s%d, s%d, %d" % (sT2, sT1, 32 * 1280)); a("s_add_u32 s%d, s%d, s%d" % (sT2, sT2, sT3))
        a("s_add_u32 s%d, s%d, s%d" % (sWO, sWO, sT2)); a("s_addc_u32 s%d, s%d, 0" % (sWO + 1, sWO + 1))

    def tail_publish_o(self):
        a = self.a; t = vT
        a("s_lshl_b32 s%d, s%d, 7" % (sT0, sW))
        a("v_lshl_add_u32 v%d, v%d, 4, s%d" % (t + 1, vL8, sT0))
        a("v_mul_u32_u24 v%d, 1536, v%d" % (t + 2, vL7))
        a("v_add_u32 v%d, v%d, v%d" % (t + 2, t + 1, t + 2))
        a("s_lshl_b32 s%d, s%d, 3" % (sT0, sH)); a("s_add_u32 s%d, s%d, s%d" % (sT0, sT0, sJ))
        a("s_mul_i32 s%d, s%d, 768" % (sT0, sT0))
        a("v_add_u32 v%d, s%d, v%d" % (t + 3, sT0, t + 1))
        self.lgkm0()
        self.xstamp(8)
        a("s_barrier")
        self.stamp(10)
        lab = a.newlabel("Lskip_o")
        a("s_cmp_lt_u32 s%d, 6" % sW); a("s_cbranch_scc0 %s" % lab)
        R = vX
        a("ds_read_b128 v[%d:%d], v%d offset:%d" % (R, R + 3, t + 2, L_STG))
        a("ds_read_b128 v[%d:%d], v%d offset:%d" % (R + 4, R + 7, t + 2, L_STG + 768))
        self.lgkm0()
        self.pk_add(R, R, R + 4); self.pk_add(R + 2, R + 2, R + 6)
        a("s_nop 1")
        self.reduce8([R, R + 1, R + 2, R + 3])
        self.tagit([R, R + 1, R + 2, R + 3])
        self.exec_set(0x01010101, 0x01010101)
        a("global_store_dwordx4 v%d, v[%d:%d], s[%d:%d] sc1" % (t + 3, R, R + 3, sO, sO + 1))
        self.exec_all()
        a.label(lab)
    def hop1_wo(self):
        a = self.a; t = vT; RL = vKD + 64; R = vX + 4; M = vX + 8
        a("s_lshl_b32 s%d, s%d, 3" % (sT0, sCG)); a("s_add_u32 s%d, s%d, s%d" % (sT0, sT0, sW))
        a("s_mul_i32 s%d, s%d, 171" % (sT1, sT0)); a("s_lshr_b32 s%d, s%d, 10" % (sT1, sT1))
        a("s_mul_i32 s%d, s%d, 6" % (sT2, sT1)); a("s_sub_u32 s%d, s%d, s%d" % (sT2, sT0, sT2))
        if self.mapping == "lin":
            a("s_lshl_b32 s%d, s%d, 3" % (sT3, sT1)); a("v_add_u32 v%d, s%d, v%d" % (t + 7, sT3, vL7))
        else:
            a("s_lshr_b32 s%d, s%d, 2" % (sT3, sT1)); a("s_and_b32 s%d, s%d, 3" % (sT0, sT1))
            a("s_lshl_b32 s%d, s%d, 3" % (sT0, sT0)); a("s_add_u32 s%d, s%d, s%d" % (sT3, sT3, sT0))
            a("v_lshl_add_u32 v%d, v%d, 5, s%d" % (t + 7, vL7, sT3))
        a("v_mul_u32_u24 v%d, %d, v%d" % (t + 7, OUT2_STRIDE, t + 7))
        a("s_mul_i32 s%d, s%d, 6144" % (sT1, sT1)); a("s_lshl_b32 s%d, s%d, 7" % (sT2, sT2))
        a("s_add_u32 s%d, s%d, s%d" % (sT1, sT1, sT2))
        a("v_mul_u32_u24 v%d, 768, v%d" % (t + 8, vL7))
        a("v_lshl_add_u32 v%d, v%d, 4, v%d" % (t + 8, vL8, t + 8))
        a("v_add_u32 v%d, s%d, v%d" % (t + 8, sT1, t + 8))
        ldm = "global_load_dwordx4 v[%d:%d], v%d, s[%d:%d] sc1" % (M, M + 3, t + 7, sOUT2, sOUT2 + 1)
        ld = "global_load_dwordx4 v[%d:%d], v%d, s[%d:%d] sc1" % (RL, RL + 3, t + 8, sO, sO + 1)
        a(ldm); a(ld)
        self.tile_addr(t + 9, 256, L_S)
        a("s_waitcnt vmcnt(1)")
        self.xstamp(3)
        def mlre(): a(ldm)
        self.poll_retry("ml", lambda: self.check_tags([M], t), mlre, sleep=self.o.get("osleep", 1), masked=bool(self.o.get("masked", 1)))
        self.xstamp(4)
        self.untag([M, M + 1])
        a("v_mov_b32 v%d, v%d" % (t, M)); a("s_nop 1")
        self.reduce8([t], "v_max_f32")
        a("s_mov_b32 s%d, 0x%08x" % (sT0, LOG2E))
        a("v_sub_f32 v%d, v%d, v%d" % (t, M, t)); a("v_mul_f32 v%d, s%d, v%d" % (t, sT0, t))
        a("v_exp_f32 v%d, v%d" % (t, t)); a("s_nop 0")
        a("v_mul_f32 v%d, v%d, v%d" % (t + 1, t, M + 1)); a("s_nop 1")
        self.reduce8([t + 1])
        a("v_rcp_f32 v%d, v%d" % (t + 1, t + 1)); a("s_nop 0")
        a("v_mul_f32 v%d, v%d, v%d" % (t + 2, t, t + 1))
        a("s_waitcnt vmcnt(0)")
        self.xstamp(5)
        if self.o.get("tdiag", 0): a("s_mov_b32 s%d, 0" % sSPIN)
        if self.o.get("pipe", 1):
            self.poll_pipe("o", lambda: self.check_tags([RL], t), lambda: a(ld), half_rtt=self.o.get("half", 8))
        else:
            self.poll_retry("o", lambda: self.check_tags([RL], t), lambda: a(ld), sleep=self.o.get("osleep", 1), masked=bool(self.o.get("masked", 1)))
        if self.o.get("tdiag", 0):
            a("s_waitcnt lgkmcnt(0)")
            a("s_mul_i32 s%d, s%d, 100" % (sT0, sSPIN))
            a("s_add_u32 s%d, s%d, s%d" % (sSTAMP + 12, sSTAMP, sT0)); a("s_addc_u32 s%d, s%d, 0" % (sSTAMP + 13, sSTAMP + 1))
        self.tstamp(11)
        for k in range(4): a("v_and_b32 v%d, 0xffffff00, v%d" % (R + k, RL + k))
        for k in range(4): a("v_mul_f32 v%d, v%d, v%d" % (R + k, t + 2, R + k))
        self.reduce8([R, R + 1, R + 2, R + 3])
        A = vKD
        for r in range(4): self.build_A(A + 4 * r, R + r)
        WO = vKD + 48; DS = vKD + 44
        a("s_nop 1")
        for r in range(4):
            c = "0" if r == 0 else "v[%d:%d]" % (DS, DS + 3)
            a("v_mfma_f32_16x16x32_bf16 v[%d:%d], v[%d:%d], v[%d:%d], %s" % (DS, DS + 3, A + 4 * r, A + 4 * r + 3, WO + 4 * r, WO + 4 * r + 3, c))
        a("s_nop 7")
        self.exec_valid()
        a("ds_write_b128 v%d, v[%d:%d]" % (t + 9, DS, DS + 3))
        self.exec_all()
        self.lgkm0()
        self.xstamp(7)
        a("s_barrier")
        lab = a.newlabel("Lskip_s")
        a("s_cmp_eq_u32 s%d, 0" % sW); a("s_cbranch_scc0 %s" % lab)
        a("s_mul_i32 s%d, s%d, %d" % (sT3, sN, OUT2_STRIDE)); a("s_add_u32 s%d, s%d, 128" % (sT3, sT3))
        self.reduce16_publish(L_S, sT3, vX)
        self.tstamp(12)
        a.label(lab)
    def reduce16_publish(self, lbase, goff, R):
        a = self.a; t = vT
        a("v_and_b32 v%d, 3, v%d" % (t, vL)); a("v_lshlrev_b32 v%d, 10, v%d" % (t, t))
        a("v_lshrrev_b32 v%d, 2, v%d" % (t + 1, vL))
        a("v_lshl_add_u32 v%d, v%d, 4, v%d" % (t, t + 1, t))
        for k in range(4): a("ds_read_b128 v[%d:%d], v%d offset:%d" % (R + 4 * k, R + 4 * k + 3, t, lbase + 256 * k))
        a("v_lshlrev_b32 v%d, 4, v%d" % (t + 1, t + 1)); a("v_add_u32 v%d, s%d, v%d" % (t + 1, goff, t + 1))
        self.lgkm0()
        for k in (0, 2):
            self.pk_add(R + k, R + k, R + 4 + k); self.pk_add(R + 8 + k, R + 8 + k, R + 12 + k)
        for k in (0, 2): self.pk_add(R + k, R + k, R + 8 + k)
        a("s_nop 0")
        for m in ("quad_perm:[1,0,3,2]", "quad_perm:[2,3,0,1]"):
            for k in range(4): a("v_add_f32_dpp v%d, v%d, v%d %s%s" % (R + k, R + k, R + k, m, DPP_ALL))
        self.tagit([R, R + 1, R + 2, R + 3])
        self.exec_set(0x11111111, 0x11111111)
        a("global_store_dwordx4 v%d, v[%d:%d], s[%d:%d] sc1" % (t + 1, R, R + 3, sOUT2, sOUT2 + 1))
        self.exec_all()
    def final(self):
        a = self.a; t = vT
        lab = a.newlabel("Lskip_fin")
        if not self.o.get("finall", 0):
            a("s_cmp_eq_u32 s%d, 0" % sW); a("s_cbranch_scc0 %s" % lab)
        a("s_cmp_lt_u32 s%d, 250" % sN); a("s_cbranch_scc0 %s" % lab)
        a("s_sub_u32 s%d, s%d, 240" % (sT3, sN))
        a("v_lshrrev_b32 v%d, 4, v%d" % (t, vL))
        a("v_mul_u32_u24 v%d, %d, v%d" % (t, 10 * OUT2_STRIDE, t))
        a("v_and_b32 v%d, 15, v%d" % (t + 1, vL))
        a("v_lshl_add_u32 v%d, v%d, 4, v%d" % (t, t + 1, t))
        a("s_mul_i32 s%d, s%d, %d" % (sT0, sT3, OUT2_STRIDE))
        a("v_add_u32 v%d, s%d, v%d" % (t, sT0, t))
        AD = vKD
        for i in range(6): a("v_add_u32 v%d, %d, v%d" % (AD + i, i * 40 * OUT2_STRIDE, t))
        RF = vKD + 8; RS = vKD + 32
        a("s_lshl_b32 s%d, s%d, 7" % (sT0, sT3))
        a("v_lshl_add_u32 v%d, v%d, 3, s%d" % (t + 2, t + 1, sT0))
        XR = vKD + 56
        a("global_load_dwordx2 v[%d:%d], v%d, s[%d:%d]" % (XR, XR + 1, t + 2, sX, sX + 1))
        def loads(R, off):
            for i in range(6):
                a("global_load_dwordx4 v[%d:%d], v%d, s[%d:%d] offset:%d sc1" % (R + 4 * i, R + 4 * i + 3, AD + i, sOUT2, sOUT2 + 1, off))
        def check(R): self.check_tags([R + 4 * i for i in range(6)], t + 3)
        def total(R, masked=False):
            if not masked: self.untag([R + k for k in range(24)])
            for i in (1, 3, 5):
                for k in (0, 2): self.pk_add(R + 4 * (i - 1) + k, R + 4 * (i - 1) + k, R + 4 * i + k)
            for i in (2, 4):
                for k in (0, 2): self.pk_add(R + k, R + k, R + 4 * i + k)
            for sw in ("v_permlane16_swap_b32", "v_permlane32_swap_b32"):
                for k in range(4): a("v_mov_b32 v%d, v%d" % (R + 4 + k, R + k))
                a("s_nop 1")
                for k in range(4): a("%s v%d, v%d" % (sw, R + k, R + 4 + k))
                a("s_nop 1")
                for k in range(4): a("v_add_f32 v%d, v%d, v%d" % (R + k, R + k, R + 4 + k))
        loads(RF, 384)
        a("s_waitcnt vmcnt(0)")
        self.poll_retry("f", lambda: check(RF), lambda: loads(RF, 384))
        if not self.o.get("finall", 0): loads(RS, 128)
        total(RF)
        for k in range(4):
            self.round_bf16(RF + k, RF + k); self.silu(RF + k, RF + k, t + 5); self.round_bf16(RF + k, RF + k)
        a("v_lshlrev_b32 v%d, 16, v%d" % (t + 6, XR)); a("v_and_b32 v%d, 0xffff0000, v%d" % (t + 7, XR))
        a("v_lshlrev_b32 v%d, 16, v%d" % (t + 8, XR + 1)); a("v_and_b32 v%d, 0xffff0000, v%d" % (t + 9, XR + 1))
        if self.o.get("finall", 0):
            lp = a.newlabel("Lstag"); dn = a.newlabel("Lstagd")
            a("s_mov_b32 s%d, s%d" % (sT0, sW))
            a.label(lp)
            a("s_cmp_eq_u32 s%d, 0" % sT0); a("s_cbranch_scc1 %s" % dn)
            a("s_sleep %d" % self.o.get("stag", 2)); a("s_sub_u32 s%d, s%d, 1" % (sT0, sT0)); a("s_branch %s" % lp)
            a.label(dn)
            loads(RS, 128)
        a("s_waitcnt vmcnt(0)")
        if self.o.get("pipe", 1):
            self.poll_pipe("s", lambda: check(RS), lambda: loads(RS, 128), half_rtt=self.o.get("half", 8), nload=6)
        else:
            self.poll_retry("s", lambda: check(RS), lambda: loads(RS, 128), sleep=self.o.get("ssleep", 0))
        self.tstamp(13)
        RL = RS; RS = vKD + 60
        for k in range(24): a("v_and_b32 v%d, 0xffffff00, v%d" % (RS + k, RL + k))
        self.untagged = True
        total(RS, True)
        for k in range(4):
            self.round_bf16(RS + k, RS + k)
            a("v_mul_f32 v%d, v%d, v%d" % (RS + k, RS + k, RF + k))
            self.round_bf16(RS + k, RS + k)
            a("v_add_f32 v%d, v%d, v%d" % (RS + k, RS + k, t + 6 + k))
        a("v_cvt_pk_bf16_f32 v%d, v%d, v%d" % (t + 10, RS, RS + 1))
        a("v_cvt_pk_bf16_f32 v%d, v%d, v%d" % (t + 11, RS + 2, RS + 3))
        a("s_mov_b64 exec, 0xffff")
        a("global_store_dwordx2 v%d, v[%d:%d], s[%d:%d]" % (t + 2, t + 10, t + 11, sOUT, sOUT + 1))
        if self.o.get("dbgtime", 0):
            a("s_memrealtime s[98:99]")
            a("s_waitcnt lgkmcnt(0)")
            a("s_sub_u32 s98, s98, s96")
            a("s_sub_u32 s99, s%d, 240" % sN); a("s_lshl_b32 s99, s99, 2")
            a("s_mov_b64 exec, 1")
            a("v_mov_b32 v%d, s99" % (t + 12)); a("v_mov_b32 v%d, s98" % (t + 13))
            a("global_store_dword v%d, v%d, s[%d:%d]" % (t + 12, t + 13, sDBG, sDBG + 1))
        lab2 = a.newlabel("Lskip_ep")
        a("s_cmp_eq_u32 s%d, 240" % sN); a("s_cbranch_scc0 %s" % lab2)
        a("s_cmp_eq_u32 s%d, 0" % sW); a("s_cbranch_scc0 %s" % lab2)
        a("s_mov_b64 exec, 1")
        a("v_mov_b32 v%d, 0x%x" % (t + 12, WS_EPOCH)); a("v_mov_b32 v%d, s%d" % (t + 13, sE))
        a("global_store_dword v%d, v%d, s[%d:%d]" % (t + 12, t + 13, sWS, sWS + 1))
        a.label(lab2)
        self.exec_all()
        self.tstamp(14)
        a.label(lab)
    def write_stamps(self):
        if not self.stamps: return
        a = self.a
        lab = a.newlabel("Lskip_st")
        if not self.o.get("stamp_all", 0):
            a("s_cmp_eq_u32 s%d, %d" % (sW, self.o.get("stamp_wave", 0))); a("s_cbranch_scc0 %s" % lab)
        self.stamp(15)
        self.lgkm0()
        a("s_add_u32 s%d, s%d, 0x%x" % (sWS, sWS, STAMP_OFF)); a("s_addc_u32 s%d, s%d, 0" % (sWS + 1, sWS + 1))
        if self.o.get("stamp_all", 0):
            a("s_lshl_b32 s%d, s%d, 3" % (sT0, sN)); a("s_add_u32 s%d, s%d, s%d" % (sT0, sT0, sW)); a("s_lshl_b32 s%d, s%d, 7" % (sT0, sT0))
        else:
            a("s_lshl_b32 s%d, s%d, 7" % (sT0, sN))
        a("v_mov_b32 v%d, s%d" % (vT, sT0))
        a("s_mov_b64 exec, 1")
        for k in range(0, 16, 2):
            for q in range(4): a("v_mov_b32 v%d, s%d" % (vT + 4 + q, sSTAMP + 2 * k + q))
            a("global_store_dwordx4 v%d, v[%d:%d], s[%d:%d] offset:%d" % (vT, vT + 4, vT + 7, sWS, sWS + 1, 8 * k))
            a("s_nop 1")
        a.label(lab)
    def attention(self, hK, hV, after_issue=None):
        a = self.a
        self.await_cnt(1, 4)
        self.read_qf()
        self.wait(hK[11]); self.qk_groups([0, 1, 2, 3])
        self.wait(hK[23]); self.qk_groups([4, 5, 6, 7])
        self.softmax()
        self.stamp(8)
        self.build_PA()
        for g in range(7):
            self.wait(hV[3 * g + 2]); self.pv_group(g)

    def streamer(self, normal):
        a = self.a; o = self.o
        self.ops = []
        a("s_setprio %d" % o.get("prio_s", 2))
        DS = o.get("ds", 6)
        NB = o.get("nb0", 2)
        hs = [self.kv_load("K", i) for i in range(NB)]
        self.b0()
        self.epoch_load()
        if o.get("pf", 1): self.code_prefetch(vX)
        items = [("K", i) for i in range(NB, 24)] + [("V", i) for i in range(24)]
        for k, (m, i) in enumerate(items):
            n = len(hs)
            if DS and n - DS >= 0: self.wait(hs[n - DS])
            hs.append(self.kv_load(m, i))
            if n == max(4, NB): self.consts()
        hK = hs[:24]; hV = hs[24:]
        self.stamp(1)
        if o.get("so", 0):
            if normal:
                self.wo_base(); self.wo_loads()
            a("s_waitcnt vmcnt(0)")
            self.stamp(9)
            return
        self.lgkm0()
        self.epoch_finish()
        if normal: self.wo_base()
        self.attention(hK, hV)
        self.wait(hV[23]); self.pv_group(7)
        self.stamp(9)
        self.wg_factor()
        self.pv_stage(scale=True)
        if normal and o.get("wo_mode", 1) in (1, 2):
            self.await_cnt(4, 4)
            a("s_setprio 3")
            self.wo_loads()
        a("s_setprio 1")

    def b0(self):
        a = self.a
        a("v_mov_b32 v%d, %d\nv_mov_b32 v%d, 0\nv_mov_b32 v%d, 0\nv_mov_b32 v%d, 0\nv_mov_b32 v%d, 0" % (vT + 8, L_CNT, vT + 10, vT + 11, vT + 12, vT + 13))
        a("s_mov_b64 exec, 1")
        a("ds_write_b128 v%d, v[%d:%d]" % (vT + 8, vT + 10, vT + 13))
        a("ds_write_b128 v%d, v[%d:%d] offset:16" % (vT + 8, vT + 10, vT + 13))
        self.exec_all()
        a("s_waitcnt lgkmcnt(0)")
        a("s_barrier")

    def worker(self, normal):
        a = self.a; o = self.o; t = vT
        self.ops = []
        a("s_setprio 3")
        a("s_sub_u32 s%d, s%d, 4" % (sWW, sW))
        PQ = vVD; PD = vVD + 48; WD = vVD + 88; DF = vVD + 84
        NE = o.get("ne", 0) if normal else o.get("ne_l", 8)
        hK = []
        nt = self.nt
        def gl(reg, va, sb, off=0): return self.vm("global_load_dwordx4 v[%d:%d], v%d, s[%d:%d] offset:%d %s" % (reg, reg + 3, va, sb, sb + 1, off, nt))
        if normal:
            a("s_mul_i32 s%d, s%d, 205" % (sCT, sN)); a("s_lshr_b32 s%d, s%d, 10" % (sCT, sCT))
            a("s_mul_i32 s%d, s%d, 5" % (sRB5, sCT)); a("s_sub_u32 s%d, s%d, s%d" % (sRB5, sN, sRB5))
            a("s_cmp_lt_u32 s%d, 40" % sCT)
            a("s_cselect_b32 s%d, s%d, s%d" % (sPB, sWG, sWU)); a("s_cselect_b32 s%d, s%d, s%d" % (sPB + 1, sWG + 1, sWU + 1))
            a("s_cselect_b32 s%d, 32, 40" % sT1)
            a("s_cmp_lt_u32 s%d, 32" % sCT)
            a("s_cselect_b32 s%d, s%d, s%d" % (sPB, sWQ, sPB)); a("s_cselect_b32 s%d, s%d, s%d" % (sPB + 1, sWQ + 1, sPB + 1))
            a("s_cselect_b32 s%d, 0, s%d" % (sT1, sT1))
            a("s_cselect_b32 s%d, 2, 0" % sSTR); a("s_lshl_b32 s%d, 3072, s%d" % (sSTR, sSTR))
            a("s_sub_u32 s%d, s%d, s%d" % (sT1, sCT, sT1)); a("s_mul_i32 s%d, s%d, 384" % (sT1, sT1))
            a("s_lshl_b32 s%d, s%d, 2" % (sT0, sRB5)); a("s_add_u32 s%d, s%d, s%d" % (sT0, sT0, sWW))
            a("s_lshl_b32 s%d, s%d, 5" % (sT0, sT0))
            a("s_mul_i32 s%d, s%d, s%d" % (sT2, sT0, sSTR)); a("s_add_u32 s%d, s%d, s%d" % (sT1, sT1, sT2))
            a("s_add_u32 s%d, s%d, s%d" % (sPB, sPB, sT1)); a("s_addc_u32 s%d, s%d, 0" % (sPB + 1, sPB + 1))
            a("v_mul_u32_u24 v%d, s%d, v%d" % (vX + 8, sSTR, vL8))
            a("v_lshl_add_u32 v%d, v%d, 4, v%d" % (vX + 8, vL7, vX + 8))
            a("s_lshl_b32 s%d, s%d, 3" % (sSTR, sSTR))
            a("v_lshlrev_b32 v%d, 2, v%d" % (t, vL))
            for k in range(5): hx = self.vm("global_load_dword v%d, v%d, s[%d:%d] offset:%d" % (vX + k, t, sX, sX + 1, 256 * k))
            a("v_add_u32 v%d, s%d, v%d" % (t + 1, sT0, vL8)); a("v_lshlrev_b32 v%d, 1, v%d" % (t + 1, t + 1))
            for g in range(4):
                hx = self.vm("global_load_ushort v%d, v%d, s[%d:%d] offset:%d" % (vQF + g, t + 1, sX, sX + 1, 16 * g))
            hlast = None
            for g in range(4):
                if g: a("v_add_u32 v%d, s%d, v%d" % (vX + 8, sSTR, vX + 8))
                for tt in range(3): hlast = gl(PQ + 12 * g + 4 * tt, vX + 8, sPB, 128 * tt)
                if g == 0:
                    self.b0()
                    self.epoch_load()
            a("s_lshl_b32 s%d, s%d, 2" % (sT1, sCG)); a("s_add_u32 s%d, s%d, s%d" % (sT1, sT1, sWW))
            a("s_mul_i32 s%d, s%d, %d" % (sT2, sT1, 16 * 1280)); a("s_lshl_b32 s%d, s%d, 7" % (sT3, sRB))
            a("s_add_u32 s%d, s%d, s%d" % (sT2, sT2, sT3))
            a("s_add_u32 s%d, s%d, s%d" % (sWD, sWD, sT2)); a("s_addc_u32 s%d, s%d, 0" % (sWD + 1, sWD + 1))
            self.stamp(1)
            if o.get("so", 0):
                a("v_mul_u32_u24 v%d, 1280, v%d" % (vX + 10, vL8))
                a("v_lshl_add_u32 v%d, v%d, 4, v%d" % (vX + 10, vL7, vX + 10))
                gl(WD, vX + 10, sWD)
                a("v_add_u32 v%d, %d, v%d" % (vX + 10, 8 * 1280, vX + 10))
                gl(WD + 4, vX + 10, sWD)
                self.wo_base()
                if o.get("so", 0) == 2:
                    a("s_waitcnt vmcnt(0)")
                    for _ in range(7): a("s_sleep 16")
                a("s_setprio %d" % o.get("prio_w", 1))
                for i in range(24): self.kv_load("K", i)
                for i in range(24): self.kv_load("V", i)
                self.stamp(8)
                self.wo_loads()
                a("s_waitcnt vmcnt(0)")
                self.stamp(9)
                return
            self.consts()
            A = [vSC, vSC + 4, vQF + 4, vQF + 8]
            self.layernorm(hx, [(vQF + g, vKD + 80 + g) for g in range(4)])
            for g in range(4): self.build_A(A[g], vKD + 80 + g)
            self.stamp(2)
            self.phaseq(hlast, A, PQ, PD)
            a("v_mul_u32_u24 v%d, 1280, v%d" % (vX + 10, vL8))
            a("v_lshl_add_u32 v%d, v%d, 4, v%d" % (vX + 10, vL7, vX + 10))
            gl(WD, vX + 10, sWD)
            a("v_add_u32 v%d, %d, v%d" % (vX + 10, 8 * 1280, vX + 10))
            gl(WD + 4, vX + 10, sWD)
            self.wo_base()
            hK += [self.kv_load("K", i) for i in range(NE)]
        else:
            hK += [self.kv_load("K", i) for i in range(2)]
            self.b0()
            self.epoch_load()
            hK += [self.kv_load("K", i) for i in range(2, NE)]
            self.stamp(1)
            if o.get("so", 0):
                for i in range(NE, 24): self.kv_load("K", i)
                for i in range(24): self.kv_load("V", i)
                a("s_waitcnt vmcnt(0)")
                self.stamp(9)
                return
            self.consts()
            self.lgkm0()
            self.epoch_finish()
        self.q_addrs(normal)
        for _ in range(o.get("qdelay", 0)): a("s_sleep 16")
        self.q_loads(normal)
        a("s_waitcnt vmcnt(0)")
        self.poll_retry("q", lambda: self.q_check(normal), lambda: self.q_loads(normal), sleep=o.get("qsleep", 2))
        self.stamp(6)
        self.ops = []
        self.q_reduce(normal, WD, DF)
        a("s_setprio %d" % o.get("prio_w", 1))
        KQ = o.get("kq", 10)
        self.dstamp(2)
        hK = [-1] * NE + [self.kv_load("K", i) for i in range(NE, 24)]
        self.dstamp(11)
        hV = [self.kv_load("V", i) for i in range(KQ)]
        self.dstamp(12)
        def W(h):
            if h >= 0: self.wait(h)
        if normal:
            lab = a.newlabel("Lskip_f")
            a("s_cmp_eq_u32 s%d, 4" % sW); a("s_cbranch_scc0 %s" % lab)
            self.f_publish()
            a.label(lab)
        self.await_cnt(1, 4)
        self.read_qf()
        W(hK[11]); self.dstamp(13); self.qk_groups([0, 1, 2, 3])
        hV += [self.kv_load("V", i) for i in range(KQ, KQ + 2)]
        W(hK[23]); self.dstamp(14); self.qk_groups([4, 5, 6, 7])
        hV += [self.kv_load("V", i) for i in range(KQ + 2, KQ + 4)]
        self.softmax()
        self.stamp(8)
        hV += [self.kv_load("V", i) for i in range(KQ + 4, 24)]
        self.dstamp(3)
        if normal and o.get("wo_mode", 1) in (1, 2, 3):
            if o.get("wo_mode", 1) != 3: self.arrive(4)
            if o.get("wo_mode", 1) in (1, 3): self.wo_loads()
        self.dstamp(4)
        self.wg_factor()
        for g in range(8): a("v_mul_f32 v%d, v%d, v%d" % (vSC + g, vFAC, vSC + g))
        self.build_PA()
        for g in range(8):
            self.wait(hV[3 * g + 2]); self.pv_group(g)
        self.stamp(9)
        self.pv_stage(scale=False)

    def run_path(self, normal):
        a = self.a
        tag = "n" if normal else "l"
        a("s_cmp_ge_u32 s%d, 4" % sW)
        a("s_cbranch_scc1 L_worker_%s" % tag)
        self.streamer(normal)
        a("s_branch L_tail_%s" % tag)
        a.label("L_worker_%s" % tag)
        self.worker(normal)
        a.label("L_tail_%s" % tag)
        if self.o.get("so", 0):
            a("s_barrier")
            self.stamp(10)
            a("s_waitcnt lgkmcnt(0)")
            a("s_getreg_b32 s%d, hwreg(HW_REG_XCC_ID)" % sT0)
            a("s_and_b32 s%d, s%d, 15" % (sT0, sT0))
            a("s_add_u32 s%d, s%d, 1" % (sT0, sT0))
            a("s_mul_i32 s%d, s%d, 100" % (sT0, sT0))
            a("s_add_u32 s%d, s%d, s%d" % (sSTAMP + 28, sSTAMP, sT0)); a("s_addc_u32 s%d, s%d, 0" % (sSTAMP + 29, sSTAMP + 1))
            self.write_stamps()
            return
        self.tail_publish_o()
        self.xstamp(1)
        wm = self.o.get("wo_mode", 1)
        if normal and wm == 0: self.wo_loads()
        if normal and wm in (2, 3):
            lab = a.newlabel("Lwo2")
            a("s_cmp_ge_u32 s%d, 4" % sW); a("s_cbranch_scc%d %s" % (0 if wm == 2 else 1, lab))
            self.wo_loads()
            a.label(lab)
        self.xstamp(2)
        if normal: self.hop1_wo()
        else: self.final()
        self.write_stamps()

    def generate(self):
        a = self.a
        self.prologue()
        if self.stamps:
            for k in range(1, 16): a("s_mov_b64 s[%d:%d], 0" % (sSTAMP + 2 * k, sSTAMP + 2 * k + 1))
        a("s_cmp_ge_u32 s%d, 240" % sN)
        a("s_cbranch_scc1 L_light")
        self.run_path(True)
        a("s_endpgm")
        a.label("L_light")
        self.run_path(False)
        a.label("L_end")
        body = a.text()
        lf = self.o.get("ldflag", 0); sf = self.o.get("stflag", 0)
        names = {0: "sc1", 1: "sc0 sc1", 2: "sc1 nt", 3: "sc0 sc1 nt"}
        out = []
        for line in body.split("\n"):
            if line.rstrip().endswith(" sc1") and "global_load" in line: line = line.rstrip()[:-3] + names[lf]
            elif line.rstrip().endswith(" sc1") and "global_store" in line: line = line.rstrip()[:-3] + names[sf]
            out.append(line)
        txt = wrap("\n".join(out), 256, 512, LDS_BYTES, vgpr=256, sgpr=100)
        return txt.replace("    s_endpgm\n.section", "    s_endpgm\nL_codeend:\n.section")

if __name__ == "__main__":
    import argparse
    ap = argparse.ArgumentParser()
    ap.add_argument("-o", default="k.s"); ap.add_argument("--D", type=int, default=3)
    ap.add_argument("--stamps", action="store_true"); ap.add_argument("--nt", default="nt")
    ap.add_argument("--mapping", default="lin"); ap.add_argument("--normp", action="store_true")
    ap.add_argument("--opt", action="append", default=[])
    args = ap.parse_args()
    opts = {}
    for kv in args.opt:
        k, v = kv.split("="); opts[k] = int(v)
    open(args.o, "w").write(Gen(args.D, args.stamps, args.nt, args.mapping, args.normp, opts).generate())
```

```python
import struct, sys
from asmlib import *

def f2u(x): return struct.unpack("<I", struct.pack("<f", x))[0]
SCALE = f2u(192 ** -0.5); LOG2E = f2u(1.4426950408889634); INV640 = f2u(1.0 / 640.0); EPS = f2u(1e-5)

WS_QP = 0x00000; QP_STRIDE = 768
WS_O = 0x80000
WS_OUT2 = 0xB0000; OUT2_STRIDE = 640
WS_EPOCH = 0xE0000
STAMP_OFF = 128 << 20
L_STG = 0
L_Q = 24576
L_F = 25088
L_S = 29184
L_CNT = 33280
L_ML = 33312
LDS_BYTES = 33408
sX, sK, sV, sWQ, sWO, sBX, sWG, sWU, sWD, sOUT, sDBG, sWS = 4, 6, 8, 10, 12, 14, 16, 18, 20, 22, 24, 26
sW = 3
sCG, sRB, sH, sJ = 28, 29, 30, 31
sT0, sT1, sT2, sT3 = 32, 33, 34, 35
sM0 = 36
sSPIN = 44
sMW, sLW, sMG, sLG = 45, 46, 47, 48
sO = 54; sOUT2 = 56
sE, sTAG4 = 58, 59
sWW = 49
sPB = 50
sSTR = 52
sCT, sRB5 = 53, 14
sN = 15
sSTAMP = 60
sSELA, sSELB, sSELC, sTAG = 92, 93, 94, 95
vL, vKO, vL8, vL7, vLDSW, vFF, vFAC = 1, 2, 3, 4, 5, 6, 7
vM = 8; vQF = 12; vSC = 24; vT = 32; vKD = 48; vVD = 144; vX = 240

DPP_ALL = " row_mask:0xf bank_mask:0xf"

class Gen:
    def __init__(self, D=3, stamps=False, nt="nt", mapping="lin", norm_p=False, opts=None):
        self.a = Asm(); self.D = D; self.stamps = stamps; self.nt = nt
        self.mapping = mapping; self.norm_p = norm_p; self.o = opts or {}
        self.ops = []
    def vm(self, text, role=None):
        self.a(text); self.ops.append(role); return len(self.ops) - 1
    def wait(self, h, role=None):
        n = sum(1 for r in self.ops[h + 1:] if r is None or (role is not None and r == role))
        assert n <= 63
        self.a("s_waitcnt vmcnt(%d)" % n)
    def stamp(self, k):
        if self.stamps and self.o.get("mini", 0) and k not in (0, 10, 14, 15): return
        if self.stamps: self.a("s_memrealtime s[%d:%d]" % (sSTAMP + 2 * k, sSTAMP + 2 * k + 1))
    def dstamp(self, k):
        if self.o.get("diag", 0): self.stamp(k)
    def xstamp(self, k):
        if self.o.get("tdiag", 0): self.stamp(k)
    def tstamp(self, k):
        if not self.o.get("diag", 0): self.stamp(k)
    def lgkm0(self): self.a("s_waitcnt lgkmcnt(0)")
    def exec_set(self, lo, hi): self.a("s_mov_b32 exec_lo, 0x%08x\ns_mov_b32 exec_hi, 0x%08x" % (lo, hi))
    def exec_valid(self): self.exec_set(0x00ff00ff, 0xff00ff00)
    def exec_all(self): self.a("s_mov_b64 exec, -1")
    def allreduce_sgpr(self, v, op, sdst):
        a = self.a
        for m in ("quad_perm:[1,0,3,2]" + DPP_ALL, "quad_perm:[2,3,0,1]" + DPP_ALL, "row_half_mirror" + DPP_ALL, "row_mirror" + DPP_ALL,
                  "row_bcast:15 row_mask:0xa bank_mask:0xf", "row_bcast:31 row_mask:0xc bank_mask:0xf"):
            a("s_nop 1"); a("%s_dpp v%d, v%d, v%d %s" % (op, v, v, v, m))
        a("s_nop 1"); a("v_readlane_b32 s%d, v%d, 63" % (sdst, v)); a("s_nop 1")
    def slots_reduce_sgpr(self, v, op, sdst):
        a = self.a
        for m in ("row_ror:8" + DPP_ALL, "row_bcast:15 row_mask:0xa bank_mask:0xf", "row_bcast:31 row_mask:0xc bank_mask:0xf"):
            a("s_nop 1"); a("%s_dpp v%d, v%d, v%d %s" % (op, v, v, v, m))
        a("s_nop 1"); a("v_readlane_b32 s%d, v%d, 63" % (sdst, v)); a("s_nop 1")
    def reduce8(self, regs, op="v_add_f32"):
        a = self.a
        for m in ("quad_perm:[1,0,3,2]", "quad_perm:[2,3,0,1]", "row_half_mirror"):
            if len(regs) < 3: a("s_nop %d" % (2 - len(regs)))
            for r in regs: a("%s_dpp v%d, v%d, v%d %s%s" % (op, r, r, r, m, DPP_ALL))
    def round_bf16(self, dst, src):
        self.a("v_cvt_pk_bf16_f32 v%d, v%d, v%d" % (dst, src, src))
        self.a("v_and_b32 v%d, 0xffff0000, v%d" % (dst, dst))
    def build_A(self, d, src):
        a = self.a
        a("v_cvt_pk_bf16_f32 v%d, v%d, v%d" % (d + 3, src, src))
        for v in range(3): a("v_and_b32 v%d, v%d, v%d" % (d + v, d + 3, vM + v))
        a("v_and_b32 v%d, v%d, v%d" % (d + 3, d + 3, vM + 3))
    def silu(self, dst, src, t):
        a = self.a
        a("v_mul_f32 v%d, 0x%08x, v%d" % (t, LOG2E ^ 0x80000000, src))
        a("v_exp_f32 v%d, v%d" % (t, t)); a("s_nop 0")
        a("v_add_f32 v%d, 1.0, v%d" % (t, t))
        a("v_rcp_f32 v%d, v%d" % (t, t)); a("s_nop 0")
        a("v_mul_f32 v%d, v%d, v%d" % (dst, src, t))
    def pk_add(self, d, x, y):
        self.a("v_pk_add_f32 v[%d:%d], v[%d:%d], v[%d:%d]" % (d, d + 1, x, x + 1, y, y + 1))
    def tagit(self, regs):
        for r in regs: self.a("v_bfi_b32 v%d, v%d, s%d, v%d" % (r, vFF, sTAG, r))
    def untag(self, regs):
        for r in regs: self.a("v_and_b32 v%d, 0xffffff00, v%d" % (r, r))
    def gather_tags(self, dst, r):
        a = self.a
        a("v_perm_b32 v%d, v%d, v%d, s%d" % (dst, r + 1, r, sSELA))
        a("v_perm_b32 v%d, v%d, v%d, s%d" % (dst, r + 2, dst, sSELB))
        a("v_perm_b32 v%d, v%d, v%d, s%d" % (dst, r + 3, dst, sSELC))
    def check_tags(self, granules, t):
        a = self.a
        self.gather_tags(t, granules[0])
        if len(granules) == 1:
            a("v_cmp_ne_u32 vcc, s%d, v%d" % (sTAG4, t)); return
        a("v_xor_b32 v%d, s%d, v%d" % (t, sTAG4, t))
        for r in granules[1:]:
            self.gather_tags(t + 1, r)
            a("v_xor_b32 v%d, s%d, v%d" % (t + 1, sTAG4, t + 1))
            a("v_or_b32 v%d, v%d, v%d" % (t, t, t + 1))
        a("v_cmp_ne_u32 vcc, 0, v%d" % t)
    def poll_retry(self, name, check_fn, reload_fn, sleep=2, masked=False):
        a = self.a
        ok = a.newlabel("Lok_" + name); re_ = a.newlabel("Lre_" + name)
        check_fn()
        a("s_cbranch_vccz %s" % ok)
        a.label(re_)
        a("s_add_u32 s%d, s%d, 1" % (sSPIN, sSPIN))
        a("s_cmp_gt_u32 s%d, 200000" % sSPIN)
        a("s_cbranch_scc1 %s" % ok)
        if sleep: a("s_sleep %d" % sleep)
        if masked: a("s_mov_b64 exec, vcc")
        reload_fn()
        if masked: self.exec_all()
        a("s_waitcnt vmcnt(0)")
        check_fn()
        a("s_cbranch_vccnz %s" % re_)
        a.label(ok)
    def poll_pipe(self, name, check_fn, load_fn, half_rtt=8, nload=1):
        a = self.a
        ok = a.newlabel("Lok_" + name); lp = a.newlabel("Llp_" + name)
        check_fn()
        a("s_cbranch_vccz %s" % ok)
        a("s_mov_b64 exec, vcc"); load_fn(); self.exec_all()
        a("s_sleep %d" % half_rtt)
        a.label(lp)
        a("s_add_u32 s%d, s%d, 1" % (sSPIN, sSPIN))
        a("s_cmp_gt_u32 s%d, 400000" % sSPIN)
        a("s_cbranch_scc1 %s" % ok)
        a("s_mov_b64 exec, vcc"); load_fn(); self.exec_all()
        a("s_waitcnt vmcnt(%d)" % nload)
        check_fn()
        a("s_cbranch_vccnz %s" % lp)
        a.label(ok)
    def prologue(self):
        a = self.a
        a("s_load_dwordx16 s[4:19], s[0:1], 0")
        a("s_load_dwordx8 s[20:27], s[0:1], 64")
        self.stamp(0)
        if self.o.get("dbgtime", 0): a("s_memrealtime s[96:97]")
        a("s_cmp_ge_u32 s2, 256")
        a("s_cbranch_scc1 L_end")
        a("v_lshrrev_b32 v%d, 6, v0" % vT)
        a("v_and_b32 v%d, 63, v0" % vL)
        a("v_readfirstlane_b32 s%d, v%d" % (sW, vT))
        a("v_lshrrev_b32 v%d, 3, v%d" % (vL8, vL))
        a("v_and_b32 v%d, 7, v%d" % (vL7, vL))
        a("v_mul_u32_u24 v%d, 384, v%d" % (vKO, vL8))
        a("v_lshl_add_u32 v%d, v%d, 4, v%d" % (vKO, vL7, vKO))
        assert self.mapping == "lin"
        a("s_lshl_b32 s%d, s2, 3" % sT0)
        a("s_add_u32 s%d, s%d, s%d" % (sT0, sT0, sW))
        a("s_mul_i32 s%d, s%d, 24576" % (sT0, sT0))
        a("s_cmp_ge_u32 s%d, 4" % sW)
        a("s_waitcnt lgkmcnt(0)")
        a("s_cbranch_scc1 L_pro_w")
        a("s_add_u32 s%d, s%d, s%d" % (sK, sK, sT0)); a("s_addc_u32 s%d, s%d, 0" % (sK + 1, sK + 1))
        self.ops = []
        a("s_setprio %d" % self.o.get("prio_s", 2))
        self.first_hs = [self.kv_load("K", i) for i in range(self.o.get("nb0", 6))]
        a("s_branch L_pro_j")
        a.label("L_pro_w")
        a("s_setprio 3")
        a("s_add_u32 s%d, s%d, s%d" % (sK, sK, sT0)); a("s_addc_u32 s%d, s%d, 0" % (sK + 1, sK + 1))
        a.label("L_pro_j")
        a("s_add_u32 s%d, s%d, s%d" % (sV, sV, sT0)); a("s_addc_u32 s%d, s%d, 0" % (sV + 1, sV + 1))
        a("s_lshr_b32 s%d, s2, 3" % sH)
        a("s_and_b32 s%d, s2, 7" % sJ)
        if self.o.get("lightodd", 1):
            a("s_sub_u32 s%d, s2, 224" % sT1)
            a("s_lshr_b32 s%d, s%d, 1" % (sT2, sT1))
            a("s_and_b32 s%d, s%d, 1" % (sT1, sT1)); a("s_lshl_b32 s%d, s%d, 4" % (sT1, sT1))
            a("s_add_u32 s%d, s%d, s%d" % (sT2, sT2, sT1)); a("s_add_u32 s%d, s%d, 224" % (sT2, sT2))
            a("s_cmp_lt_u32 s2, 224")
            a("s_cselect_b32 s%d, s2, s%d" % (sN, sT2))
        else:
            a("s_mov_b32 s%d, s2" % sN)
        a("s_mul_i32 s%d, s%d, 205" % (sCG, sN))
        a("s_lshr_b32 s%d, s%d, 11" % (sCG, sCG))
        a("s_mul_i32 s%d, s%d, 10" % (sRB, sCG))
        a("s_sub_u32 s%d, s%d, s%d" % (sRB, sN, sRB))
        a("s_mov_b32 s%d, 0" % sSPIN)
    def kv_load(self, which, i):
        a = self.a
        base = sK if which == "K" else sV
        reg = (vKD if which == "K" else vVD) + 4 * i
        grp, t = divmod(i, 3)
        ki = self.o.get("kvint", 0)
        if ki:
            if grp > 0 and t == 0:
                a("s_add_u32 s%d, s%d, %d" % (base, base, 196608 if ki == 1 else 24576)); a("s_addc_u32 s%d, s%d, 0" % (base + 1, base + 1))
            off = t * 128
        else:
            if grp > 0 and grp % 2 == 0 and t == 0:
                a("s_add_u32 s%d, s%d, 6144" % (base, base)); a("s_addc_u32 s%d, s%d, 0" % (base + 1, base + 1))
            off = (grp % 2) * 3072 + t * 128
        return self.vm("global_load_dwordx4 v[%d:%d], v%d, s[%d:%d] offset:%d %s" % (reg, reg + 3, vKO, base, base + 1, off, self.nt))
    def consts(self):
        a = self.a
        a("v_and_b32 v%d, 1, v%d" % (vT, vL))
        a("v_lshlrev_b32 v%d, 4, v%d" % (vT, vT))
        a("v_mov_b32 v%d, 0xffff" % (vT + 1))
        a("v_lshlrev_b32 v%d, v%d, v%d" % (vT + 1, vT, vT + 1))
        a("v_bfe_u32 v%d, v%d, 1, 2" % (vT + 2, vL))
        for v in range(4): a("v_cmp_eq_u32 s[%d:%d], %d, v%d" % (sM0 + 2 * v, sM0 + 2 * v + 1, v, vT + 2))
        a("s_nop 0")
        for v in range(4): a("v_cndmask_b32 v%d, 0, v%d, s[%d:%d]" % (vM + v, vT + 1, sM0 + 2 * v, sM0 + 2 * v + 1))
        a("v_bfe_u32 v%d, v%d, 4, 1" % (vT, vL))
        a("v_lshlrev_b32 v%d, 4, v%d" % (vT, vT))
        a("v_lshl_add_u32 v%d, v%d, 5, v%d" % (vLDSW, vL7, vT))
        a("v_mov_b32 v%d, 0xff" % vFF)
        a("s_mov_b32 s%d, 0x0c0c0400" % sSELA)
        a("s_mov_b32 s%d, 0x0c040100" % sSELB)
        a("s_mov_b32 s%d, 0x04020100" % sSELC)
        a("s_add_u32 s%d, s%d, 0x%x" % (sO, sWS, WS_O)); a("s_addc_u32 s%d, s%d, 0" % (sO + 1, sWS + 1))
        a("s_add_u32 s%d, s%d, 0x%x" % (sOUT2, sWS, WS_OUT2)); a("s_addc_u32 s%d, s%d, 0" % (sOUT2 + 1, sWS + 1))
    def epoch_load(self):
        self.a("s_load_dword s%d, s[%d:%d], 0x%x" % (sE, sWS, sWS + 1, WS_EPOCH))
    def epoch_finish(self):
        a = self.a
        a("s_add_u32 s%d, s%d, 1" % (sE, sE))
        a("s_and_b32 s%d, s%d, 0xff" % (sTAG, sE))
        a("s_mul_i32 s%d, s%d, 0x01010101" % (sTAG4, sTAG))
    def tile_addr(self, dst, stride, base, colshift=0, sw=None):
        a = self.a
        a("v_lshrrev_b32 v%d, 5, v%d" % (dst, vL))
        a("s_lshl_b32 s%d, s%d, 1" % (sT0, sW if sw is None else sw))
        a("v_add_u32 v%d, s%d, v%d" % (dst, sT0, dst))
        a("v_mul_u32_u24 v%d, %d, v%d" % (dst, stride, dst))
        if colshift: a("v_lshl_add_u32 v%d, v%d, %d, v%d" % (dst, vLDSW, colshift, dst))
        else: a("v_add_u32 v%d, v%d, v%d" % (dst, dst, vLDSW))
        if base: a("v_add_u32 v%d, %d, v%d" % (dst, base, dst))
    def code_prefetch(self, dst):
        a = self.a
        a("s_getpc_b64 s[%d:%d]" % (sT0, sT1))
        lab = a.newlabel("Lpc"); a.label(lab)
        a("s_sub_u32 s%d, s%d, %s-%s" % (sT0, sT0, lab, KNAME))
        a("s_subb_u32 s%d, s%d, 0" % (sT1, sT1))
        a("s_lshr_b32 s%d, s2, 3" % sT2); a("s_and_b32 s%d, s%d, 7" % (sT2, sT2))
        a("s_lshl_b32 s%d, s%d, 2" % (sT2, sT2)); a("s_add_u32 s%d, s%d, s%d" % (sT2, sT2, sW))
        a("s_lshl_b32 s%d, s%d, 10" % (sT2, sT2))
        a("v_lshl_add_u32 v%d, v%d, 4, s%d" % (vT, vL, sT2))
        a("v_min_u32 v%d, L_codeend-%s-16, v%d" % (vT, KNAME, vT))
        return self.vm("global_load_dwordx4 v[%d:%d], v%d, s[%d:%d]" % (dst, dst + 3, vT, sT0, sT1))
    def layernorm(self, hx, own):
        a = self.a; t = vT
        self.wait(hx)
        u = vX + 6
        for k in range(5):
            a("v_lshlrev_b32 v%d, 16, v%d" % (u + 2 * k, vX + k))
            a("v_and_b32 v%d, 0xffff0000, v%d" % (u + 2 * k + 1, vX + k))
        a("v_add_f32 v%d, v%d, v%d" % (t, u, u + 1))
        for k in range(2, 10): a("v_add_f32 v%d, v%d, v%d" % (t, t, u + k))
        self.allreduce_sgpr(t, "v_add_f32", sT0)
        a("v_mov_b32 v%d, 0x%08x" % (t + 1, INV640))
        a("v_mul_f32 v%d, s%d, v%d" % (t + 2, sT0, t + 1))
        a("v_sub_f32 v%d, v%d, v%d" % (u, u, t + 2))
        a("v_mul_f32 v%d, v%d, v%d" % (t, u, u))
        for k in range(1, 10):
            a("v_sub_f32 v%d, v%d, v%d" % (u + k, u + k, t + 2))
            a("v_fmac_f32 v%d, v%d, v%d" % (t, u + k, u + k))
        self.allreduce_sgpr(t, "v_add_f32", sT0)
        a("v_mul_f32 v%d, s%d, v%d" % (t + 3, sT0, t + 1))
        self.round_bf16(t + 2, t + 2)
        self.round_bf16(t + 3, t + 3)
        a("v_add_f32 v%d, 0x%08x, v%d" % (t + 3, EPS, t + 3))
        self.round_bf16(t + 3, t + 3)
        a("v_sqrt_f32 v%d, v%d" % (t + 3, t + 3)); a("s_nop 0")
        self.round_bf16(t + 3, t + 3)
        a("v_rcp_f32 v%d, v%d" % (t + 5, t + 3))
        for src, dst in own:
            a("v_lshlrev_b32 v%d, 16, v%d" % (t + 4, src))
            a("v_sub_f32 v%d, v%d, v%d" % (t + 4, t + 4, t + 2))
            self.round_bf16(t + 4, t + 4)
            a("v_mul_f32 v%d, v%d, v%d" % (t + 6, t + 4, t + 5))
            a("v_fma_f32 v%d, -v%d, v%d, v%d" % (t + 7, t + 6, t + 3, t + 4))
            a("v_fma_f32 v%d, v%d, v%d, v%d" % (dst, t + 7, t + 5, t + 6))

    def arrive(self, c):
        a = self.a
        self.lgkm0()
        a("v_mov_b32 v%d, %d" % (vT + 14, L_CNT + 4 * c)); a("v_mov_b32 v%d, 1" % (vT + 15))
        a("s_mov_b64 exec, 1")
        a("ds_add_u32 v%d, v%d" % (vT + 14, vT + 15))
        self.exec_all()
    def await_cnt(self, c, target):
        a = self.a
        lp = a.newlabel("Lcw"); ok = a.newlabel("Lcok")
        a("v_mov_b32 v%d, %d" % (vT + 14, L_CNT + 4 * c))
        a.label(lp)
        a("ds_read_b32 v%d, v%d" % (vT + 15, vT + 14))
        self.lgkm0()
        a("v_readfirstlane_b32 s%d, v%d" % (sT0, vT + 15))
        a("s_add_u32 s%d, s%d, 1" % (sSPIN, sSPIN))
        a("s_cmp_ge_u32 s%d, %d" % (sT0, target))
        a("s_cbranch_scc1 %s" % ok)
        a("s_cmp_gt_u32 s%d, 4000000" % sSPIN)
        a("s_cbranch_scc1 %s" % ok)
        a("s_sleep 1")
        a("s_branch %s" % lp)
        a.label(ok)

    def phaseq(self, hlast, A, PQ, PD):
        a = self.a; t = vT
        self.wait(hlast)
        self.stamp(3)
        for g in range(4):
            for tt in range(3):
                c = "0" if g == 0 else "v[%d:%d]" % (PD + 4 * tt, PD + 4 * tt + 3)
                B = PQ + 12 * g + 4 * tt
                a("v_mfma_f32_16x16x32_bf16 v[%d:%d], v[%d:%d], v[%d:%d], %s" % (PD + 4 * tt, PD + 4 * tt + 3, A[g], A[g] + 3, B, B + 3, c))
        self.tile_addr(t, 768, L_STG, sw=sWW)
        a("v_and_b32 v%d, 3, v%d" % (t + 2, vL)); a("v_mul_u32_u24 v%d, 1536, v%d" % (t + 2, t + 2))
        a("v_lshrrev_b32 v%d, 2, v%d" % (t + 6, vL)); a("v_min_u32 v%d, 11, v%d" % (t + 6, t + 6))
        a("s_mul_i32 s%d, s%d, 12" % (sT1, sWW)); a("v_add_u32 v%d, s%d, v%d" % (t + 6, sT1, t + 6))
        a("v_lshl_add_u32 v%d, v%d, 4, v%d" % (t + 3, t + 6, t + 2))
        a("s_mul_i32 s%d, s%d, %d" % (sT1, sN, QP_STRIDE))
        a("v_lshl_add_u32 v%d, v%d, 4, s%d" % (t + 5, t + 6, sT1))
        self.exec_valid()
        for tt in range(3): a("ds_write_b128 v%d, v[%d:%d] offset:%d" % (t, PD + 4 * tt, PD + 4 * tt + 3, 256 * tt))
        self.exec_all()
        self.arrive(0)
        self.epoch_finish()
        self.await_cnt(0, 4)
        self.stamp(4)
        R = PD
        a("ds_read_b128 v[%d:%d], v%d offset:%d" % (R, R + 3, t + 3, L_STG))
        a("ds_read_b128 v[%d:%d], v%d offset:%d" % (R + 4, R + 7, t + 3, L_STG + 768))
        self.lgkm0()
        self.pk_add(R, R, R + 4); self.pk_add(R + 2, R + 2, R + 6)
        a("s_nop 1")
        for m in ("quad_perm:[1,0,3,2]", "quad_perm:[2,3,0,1]"):
            for r in (R, R + 1, R + 2, R + 3): a("v_add_f32_dpp v%d, v%d, v%d %s%s" % (r, r, r, m, DPP_ALL))
        self.tagit([R, R + 1, R + 2, R + 3])
        self.exec_set(0x11111111, 0x00001111)
        self.vm("global_store_dwordx4 v%d, v[%d:%d], s[%d:%d] sc1" % (t + 5, R, R + 3, sWS, sWS + 1))
        self.exec_all()
        self.stamp(5)

    GQ = vVD
    GU = vVD + 8
    GA = vVD + 32
    def q_addrs(self, normal):
        a = self.a; t = vT; GA = self.GA
        a("s_mul_i32 s%d, s%d, %d" % (sT0, sH, 5 * QP_STRIDE)); a("s_mul_i32 s%d, s%d, 192" % (sT1, sWW))
        a("s_add_u32 s%d, s%d, s%d" % (sT0, sT0, sT1))
        a("v_min_u32 v%d, 4, v%d" % (t + 1, vL7))
        a("v_mul_u32_u24 v%d, %d, v%d" % (t + 1, QP_STRIDE, t + 1))
        a("v_lshl_add_u32 v%d, v%d, 4, v%d" % (t + 2, vL8, t + 1))
        a("v_add_u32 v%d, s%d, v%d" % (GA, sT0, t + 2))
        if normal:
            a("s_mul_i32 s%d, s%d, 171" % (sT0, sCG)); a("s_lshr_b32 s%d, s%d, 9" % (sT0, sT0))
            a("s_mul_i32 s%d, s%d, 3" % (sT1, sT0)); a("s_sub_u32 s%d, s%d, s%d" % (sT1, sCG, sT1))
            a("s_add_u32 s%d, s%d, 32" % (sT0, sT0)); a("s_mul_i32 s%d, s%d, %d" % (sT0, sT0, 5 * QP_STRIDE))
            a("s_lshl_b32 s%d, s%d, 8" % (sT1, sT1)); a("s_add_u32 s%d, s%d, s%d" % (sT0, sT0, sT1))
            a("s_lshl_b32 s%d, s%d, 6" % (sT1, sWW)); a("s_add_u32 s%d, s%d, s%d" % (sT0, sT0, sT1))
            a("v_lshrrev_b32 v%d, 2, v%d" % (t + 2, vL8))
            a("v_lshl_add_u32 v%d, v%d, 4, v%d" % (t + 2, t + 2, t + 1))
            a("v_add_u32 v%d, s%d, v%d" % (GA + 1, sT0, t + 2))
            a("v_add_u32 v%d, %d, v%d" % (GA + 2, 40 * QP_STRIDE, GA + 1))
    def q_loads(self, normal):
        a = self.a; GQ, GU, GA = self.GQ, self.GU, self.GA
        for k in range(8): a("v_mov_b32 v%d, s%d" % (GQ + k, sTAG))
        if normal:
            for k in range(16): a("v_mov_b32 v%d, s%d" % (GU + k, sTAG))
        self.exec_set(0x1f1f1f1f, 0x1f1f1f1f)
        a("global_load_dwordx4 v[%d:%d], v%d, s[%d:%d] sc1" % (GQ, GQ + 3, GA, sWS, sWS + 1))
        if normal:
            a("global_load_dwordx4 v[%d:%d], v%d, s[%d:%d] sc1" % (GU, GU + 3, GA + 1, sWS, sWS + 1))
            a("global_load_dwordx4 v[%d:%d], v%d, s[%d:%d] offset:32 sc1" % (GU + 4, GU + 7, GA + 1, sWS, sWS + 1))
            a("global_load_dwordx4 v[%d:%d], v%d, s[%d:%d] sc1" % (GU + 8, GU + 11, GA + 2, sWS, sWS + 1))
            a("global_load_dwordx4 v[%d:%d], v%d, s[%d:%d] offset:32 sc1" % (GU + 12, GU + 15, GA + 2, sWS, sWS + 1))
        a("s_mov_b32 exec_hi, 0")
        a("global_load_dwordx4 v[%d:%d], v%d, s[%d:%d] offset:128 sc1" % (GQ + 4, GQ + 7, GA, sWS, sWS + 1))
        self.exec_all()
    def q_check(self, normal):
        g = [self.GQ, self.GQ + 4]
        if normal: g += [self.GU, self.GU + 4, self.GU + 8, self.GU + 12]
        self.check_tags(g, vT)
    def q_reduce(self, normal, WD, DF):
        a = self.a; t = vT; GQ, GU = self.GQ, self.GU
        regs = [GQ + k for k in range(8)]
        self.untag(regs)
        self.reduce8(regs)
        for i in range(2):
            a("v_cvt_pk_bf16_f32 v%d, v%d, v%d" % (t + 2 * i, GQ + 4 * i, GQ + 4 * i + 1))
            a("v_cvt_pk_bf16_f32 v%d, v%d, v%d" % (t + 2 * i + 1, GQ + 4 * i + 2, GQ + 4 * i + 3))
        a("s_mul_i32 s%d, s%d, 96" % (sT0, sWW)); a("s_add_u32 s%d, s%d, %d" % (sT0, sT0, L_Q))
        a("v_lshl_add_u32 v%d, v%d, 3, s%d" % (t + 6, vL8, sT0))
        self.exec_set(0x01010101, 0x01010101)
        a("ds_write_b64 v%d, v[%d:%d]" % (t + 6, t, t + 1))
        a("s_mov_b32 exec_hi, 0")
        a("ds_write_b64 v%d, v[%d:%d] offset:64" % (t + 6, t + 2, t + 3))
        self.exec_all()
        self.arrive(1)
        self.stamp(7)
        if normal:
            a("v_and_b32 v%d, 3, v%d" % (t, vL8))
            for k in (1, 2, 3): a("v_cmp_eq_u32 s[%d:%d], %d, v%d" % (sM0 + 2 * k, sM0 + 2 * k + 1, k, t))
            a("s_nop 0")
            for q in range(4):
                for k in (1, 2, 3):
                    a("v_cndmask_b32 v%d, v%d, v%d, s[%d:%d]" % (GU + 4 * q, GU + 4 * q, GU + 4 * q + k, sM0 + 2 * k, sM0 + 2 * k + 1))
            sel = [GU, GU + 4, GU + 8, GU + 12]
            self.untag(sel)
            self.reduce8(sel)
            for g, u in ((GU, GU + 8), (GU + 4, GU + 12)):
                self.round_bf16(g, g); self.round_bf16(u, u)
                self.silu(g, g, t + 3)
                self.round_bf16(g, g)
                a("v_mul_f32 v%d, v%d, v%d" % (g, g, u))
            A0, A1 = t + 4, t + 8
            self.build_A(A0, GU); self.build_A(A1, GU + 4)
            a("s_nop 1")
            a("v_mfma_f32_16x16x32_bf16 v[%d:%d], v[%d:%d], v[%d:%d], 0" % (DF, DF + 3, A0, A0 + 3, WD, WD + 3))
            a("v_mfma_f32_16x16x32_bf16 v[%d:%d], v[%d:%d], v[%d:%d], v[%d:%d]" % (DF, DF + 3, A1, A1 + 3, WD + 4, WD + 7, DF, DF + 3))
            self.tile_addr(t + 12, 256, L_F, sw=sWW)
            a("s_nop 4")
            self.exec_valid()
            a("ds_write_b128 v%d, v[%d:%d]" % (t + 12, DF, DF + 3))
            self.exec_all()
            self.arrive(2)
    def f_publish(self):
        a = self.a; t = vT; R = vX
        self.await_cnt(2, 4)
        a("v_and_b32 v%d, 3, v%d" % (t, vL)); a("v_lshlrev_b32 v%d, 9, v%d" % (t, t))
        a("v_lshrrev_b32 v%d, 2, v%d" % (t + 1, vL))
        a("v_lshl_add_u32 v%d, v%d, 4, v%d" % (t, t + 1, t))
        a("ds_read_b128 v[%d:%d], v%d offset:%d" % (R, R + 3, t, L_F))
        a("ds_read_b128 v[%d:%d], v%d offset:%d" % (R + 4, R + 7, t, L_F + 256))
        a("s_mul_i32 s%d, s%d, %d" % (sT3, sN, OUT2_STRIDE)); a("s_add_u32 s%d, s%d, 384" % (sT3, sT3))
        a("v_lshlrev_b32 v%d, 4, v%d" % (t + 1, t + 1)); a("v_add_u32 v%d, s%d, v%d" % (t + 1, sT3, t + 1))
        self.lgkm0()
        self.pk_add(R, R, R + 4); self.pk_add(R + 2, R + 2, R + 6)
        a("s_nop 1")
        for m in ("quad_perm:[1,0,3,2]", "quad_perm:[2,3,0,1]"):
            for k in range(4): a("v_add_f32_dpp v%d, v%d, v%d %s%s" % (R + k, R + k, R + k, m, DPP_ALL))
        self.tagit([R, R + 1, R + 2, R + 3])
        self.exec_set(0x11111111, 0x11111111)
        self.vm("global_store_dwordx4 v%d, v[%d:%d], s[%d:%d] sc1" % (t + 1, R, R + 3, sOUT2, sOUT2 + 1), "w4")
        self.exec_all()
    def read_qf(self):
        a = self.a
        a("v_lshlrev_b32 v%d, 4, v%d" % (vT, vL7))
        for t in range(3): a("ds_read_b128 v[%d:%d], v%d offset:%d" % (vQF + 4 * t, vQF + 4 * t + 3, vT, L_Q + 128 * t))
        self.lgkm0()
    def qk_groups(self, groups):
        a = self.a
        for t in range(3):
            for v in range(4):
                for g in groups:
                    k = vKD + 12 * g + 4 * t + v
                    src2 = "0" if (t == 0 and v == 0) else "v%d" % (vSC + g)
                    a("v_dot2_f32_bf16 v%d, v%d, v%d, %s" % (vSC + g, k, vQF + 4 * t + v, src2))
    def softmax(self):
        a = self.a; t = vT
        a("s_nop 2")
        self.reduce8([vSC + g for g in range(8)])
        a("s_mov_b32 s%d, 0x%08x" % (sT0, SCALE))
        for g in range(0, 8, 2):
            a("v_cvt_pk_bf16_f32 v%d, v%d, v%d" % (t, vSC + g, vSC + g + 1))
            a("v_lshlrev_b32 v%d, 16, v%d" % (vSC + g, t))
            a("v_and_b32 v%d, 0xffff0000, v%d" % (vSC + g + 1, t))
            a("v_mul_f32 v%d, s%d, v%d" % (vSC + g, sT0, vSC + g))
            a("v_mul_f32 v%d, s%d, v%d" % (vSC + g + 1, sT0, vSC + g + 1))
            a("v_cvt_pk_bf16_f32 v%d, v%d, v%d" % (t, vSC + g, vSC + g + 1))
            a("v_lshlrev_b32 v%d, 16, v%d" % (vSC + g, t))
            a("v_and_b32 v%d, 0xffff0000, v%d" % (vSC + g + 1, t))
        a("v_max3_f32 v%d, v%d, v%d, v%d" % (t, vSC, vSC + 1, vSC + 2))
        a("v_max3_f32 v%d, v%d, v%d, v%d" % (t + 1, vSC + 3, vSC + 4, vSC + 5))
        a("v_max3_f32 v%d, v%d, v%d, v%d" % (t, t, vSC + 6, vSC + 7))
        a("v_max_f32 v%d, v%d, v%d" % (t, t, t + 1))
        self.slots_reduce_sgpr(t, "v_max_f32", sMW)
        a("s_mov_b32 s%d, 0x%08x" % (sT0, LOG2E))
        for g in range(8):
            a("v_subrev_f32 v%d, s%d, v%d" % (vSC + g, sMW, vSC + g))
            a("v_mul_f32 v%d, s%d, v%d" % (vSC + g, sT0, vSC + g))
            a("v_exp_f32 v%d, v%d" % (vSC + g, vSC + g))
        a("s_nop 0")
        a("v_add_f32 v%d, v%d, v%d" % (t, vSC, vSC + 1)); a("v_add_f32 v%d, v%d, v%d" % (t + 1, vSC + 2, vSC + 3))
        a("v_add_f32 v%d, v%d, v%d" % (t + 2, vSC + 4, vSC + 5)); a("v_add_f32 v%d, v%d, v%d" % (t + 3, vSC + 6, vSC + 7))
        a("v_add_f32 v%d, v%d, v%d" % (t, t, t + 1)); a("v_add_f32 v%d, v%d, v%d" % (t + 2, t + 2, t + 3))
        a("v_add_f32 v%d, v%d, v%d" % (t, t, t + 2))
        self.slots_reduce_sgpr(t, "v_add_f32", sLW)
        a("s_lshl_b32 s%d, s%d, 3" % (sT0, sW)); a("s_add_u32 s%d, s%d, %d" % (sT0, sT0, L_ML))
        a("v_mov_b32 v%d, s%d" % (t, sT0))
        a("v_mov_b32 v%d, s%d" % (t + 2, sMW)); a("v_mov_b32 v%d, s%d" % (t + 3, sLW))
        a("s_mov_b64 exec, 1")
        a("ds_write_b64 v%d, v[%d:%d]" % (t, t + 2, t + 3))
        self.exec_all()
        self.arrive(3)
    def build_PA(self):
        for g in range(8): self.build_A(vKD + 4 * g, vSC + g)
    def pv_group(self, g):
        DA = vKD + 32
        for t in range(3):
            B = vVD + 12 * g + 4 * t
            c = "0" if g == 0 else "v[%d:%d]" % (DA + 4 * t, DA + 4 * t + 3)
            self.a("v_mfma_f32_16x16x32_bf16 v[%d:%d], v[%d:%d], v[%d:%d], %s" % (DA + 4 * t, DA + 4 * t + 3, vKD + 4 * g, vKD + 4 * g + 3, B, B + 3, c))
    def wg_factor(self):
        a = self.a; t = vT
        self.await_cnt(3, 8)
        a("v_lshlrev_b32 v%d, 3, v%d" % (t, vL7))
        a("ds_read_b64 v[%d:%d], v%d offset:%d" % (t + 2, t + 3, t, L_ML))
        self.lgkm0()
        a("v_mov_b32 v%d, v%d" % (t + 4, t + 2))
        a("s_nop 1")
        self.reduce8([t + 4], "v_max_f32")
        a("s_mov_b32 s%d, 0x%08x" % (sT0, LOG2E))
        a("v_sub_f32 v%d, s%d, v%d" % (vFAC, sMW, t + 4))
        a("v_mul_f32 v%d, s%d, v%d" % (vFAC, sT0, vFAC))
        a("v_exp_f32 v%d, v%d" % (vFAC, vFAC))
        lab = a.newlabel("Lskip_ml")
        a("s_cmp_eq_u32 s%d, 0" % sW); a("s_cbranch_scc0 %s" % lab)
        a("v_sub_f32 v%d, v%d, v%d" % (t + 5, t + 2, t + 4))
        a("v_mul_f32 v%d, s%d, v%d" % (t + 5, sT0, t + 5))
        a("v_exp_f32 v%d, v%d" % (t + 5, t + 5)); a("s_nop 0")
        a("v_mul_f32 v%d, v%d, v%d" % (t + 5, t + 5, t + 3))
        a("s_nop 1")
        self.reduce8([t + 5])
        a("v_mov_b32 v%d, v%d\nv_mov_b32 v%d, v%d" % (t + 6, t + 4, t + 7, t + 5))
        self.tagit([t + 4, t + 5, t + 6, t + 7])
        a("s_mul_i32 s%d, s2, %d" % (sT1, OUT2_STRIDE)); a("v_mov_b32 v%d, s%d" % (t, sT1))
        a("s_mov_b64 exec, 1")
        self.vm("global_store_dwordx4 v%d, v[%d:%d], s[%d:%d] sc1" % (t, t + 4, t + 7, sOUT2, sOUT2 + 1), "w0")
        self.exec_all()
        a.label(lab)
    def pv_stage(self, scale=True):
        a = self.a; t = vT; DA = vKD + 32
        self.tile_addr(t, 768, L_STG)
        a("s_nop 3")
        if scale:
            for k in range(12): a("v_mul_f32 v%d, v%d, v%d" % (DA + k, vFAC, DA + k))
        self.exec_valid()
        for tt in range(3): a("ds_write_b128 v%d, v[%d:%d] offset:%d" % (t, DA + 4 * tt, DA + 4 * tt + 3, 256 * tt))
        self.exec_all()
    def wo_loads(self):
        a = self.a; WO = vKD + 48
        a("v_mul_u32_u24 v%d, 5120, v%d" % (vX + 13, vL8))
        a("v_lshl_add_u32 v%d, v%d, 4, v%d" % (vX + 13, vL7, vX + 13))
        for r in range(4):
            self.vm("global_load_dwordx4 v[%d:%d], v%d, s[%d:%d] offset:%d %s" % (WO + 4 * r, WO + 4 * r + 3, vX + 13, sWO, sWO + 1, 1280 * r, self.nt))
    def wo_base(self):
        a = self.a
        a("s_lshl_b32 s%d, s%d, 3" % (sT1, sCG)); a("s_add_u32 s%d, s%d, s%d" % (sT1, sT1, sW))
        a("s_lshl_b32 s%d, s%d, 7" % (sT3, sRB))
        a("s_mul_i32 s%d, s%d, %d" % (sT2, sT1, 32 * 1280)); a("s_add_u32 s%d, s%d, s%d" % (sT2, sT2, sT3))
        a("s_add_u32 s%d, s%d, s%d" % (sWO, sWO, sT2)); a("s_addc_u32 s%d, s%d, 0" % (sWO + 1, sWO + 1))

    def tail_publish_o(self):
        a = self.a; t = vT
        a("s_lshl_b32 s%d, s%d, 7" % (sT0, sW))
        a("v_lshl_add_u32 v%d, v%d, 4, s%d" % (t + 1, vL8, sT0))
        a("v_mul_u32_u24 v%d, 1536, v%d" % (t + 2, vL7))
        a("v_add_u32 v%d, v%d, v%d" % (t + 2, t + 1, t + 2))
        a("s_lshl_b32 s%d, s%d, 3" % (sT0, sH)); a("s_add_u32 s%d, s%d, s%d" % (sT0, sT0, sJ))
        a("s_mul_i32 s%d, s%d, 768" % (sT0, sT0))
        a("v_add_u32 v%d, s%d, v%d" % (t + 3, sT0, t + 1))
        self.lgkm0()
        self.xstamp(8)
        a("s_barrier")
        self.stamp(10)
        lab = a.newlabel("Lskip_o")
        a("s_cmp_lt_u32 s%d, 6" % sW); a("s_cbranch_scc0 %s" % lab)
        R = vX
        a("ds_read_b128 v[%d:%d], v%d offset:%d" % (R, R + 3, t + 2, L_STG))
        a("ds_read_b128 v[%d:%d], v%d offset:%d" % (R + 4, R + 7, t + 2, L_STG + 768))
        self.lgkm0()
        self.pk_add(R, R, R + 4); self.pk_add(R + 2, R + 2, R + 6)
        a("s_nop 1")
        self.reduce8([R, R + 1, R + 2, R + 3])
        self.tagit([R, R + 1, R + 2, R + 3])
        self.exec_set(0x01010101, 0x01010101)
        a("global_store_dwordx4 v%d, v[%d:%d], s[%d:%d] sc1" % (t + 3, R, R + 3, sO, sO + 1))
        self.exec_all()
        a.label(lab)
    H_RL = vKD + 64
    H_M = vKD + 72
    H_AM = vKD + 68
    H_AO = vKD + 69
    def hop1_addrs(self):
        a = self.a; t = vT
        a("s_lshl_b32 s%d, s%d, 3" % (sT0, sCG)); a("s_add_u32 s%d, s%d, s%d" % (sT0, sT0, sW))
        a("s_mul_i32 s%d, s%d, 171" % (sT1, sT0)); a("s_lshr_b32 s%d, s%d, 10" % (sT1, sT1))
        a("s_mul_i32 s%d, s%d, 6" % (sT2, sT1)); a("s_sub_u32 s%d, s%d, s%d" % (sT2, sT0, sT2))
        if self.mapping == "lin":
            a("s_lshl_b32 s%d, s%d, 3" % (sT3, sT1)); a("v_add_u32 v%d, s%d, v%d" % (self.H_AM, sT3, vL7))
        else:
            a("s_lshr_b32 s%d, s%d, 2" % (sT3, sT1)); a("s_and_b32 s%d, s%d, 3" % (sT0, sT1))
            a("s_lshl_b32 s%d, s%d, 3" % (sT0, sT0)); a("s_add_u32 s%d, s%d, s%d" % (sT3, sT3, sT0))
            a("v_lshl_add_u32 v%d, v%d, 5, s%d" % (self.H_AM, vL7, sT3))
        a("v_mul_u32_u24 v%d, %d, v%d" % (self.H_AM, OUT2_STRIDE, self.H_AM))
        a("s_mul_i32 s%d, s%d, 6144" % (sT1, sT1)); a("s_lshl_b32 s%d, s%d, 7" % (sT2, sT2))
        a("s_add_u32 s%d, s%d, s%d" % (sT1, sT1, sT2))
        a("v_mul_u32_u24 v%d, 768, v%d" % (self.H_AO, vL7))
        a("v_lshl_add_u32 v%d, v%d, 4, v%d" % (self.H_AO, vL8, self.H_AO))
        a("v_add_u32 v%d, s%d, v%d" % (self.H_AO, sT1, self.H_AO))
    def hop1_ldm(self): return "global_load_dwordx4 v[%d:%d], v%d, s[%d:%d] sc1" % (self.H_M, self.H_M + 3, self.H_AM, sOUT2, sOUT2 + 1)
    def hop1_ld(self): return "global_load_dwordx4 v[%d:%d], v%d, s[%d:%d] sc1" % (self.H_RL, self.H_RL + 3, self.H_AO, sO, sO + 1)
    def hop1_first(self, track):
        self.hop1_addrs()
        if track: self.vm(self.hop1_ldm()); self.vm(self.hop1_ld())
        else: self.a(self.hop1_ldm()); self.a(self.hop1_ld())
    def hop1_wo(self):
        a = self.a; t = vT; RL = self.H_RL; R = vX + 4; M = self.H_M
        early = self.o.get("early", 0)
        if not early: self.hop1_first(False)
        ldm = self.hop1_ldm(); ld = self.hop1_ld()
        self.tile_addr(t + 9, 256, L_S)
        if early:
            lb = a.newlabel("Lw67")
            a("s_cmp_lt_u32 s%d, 6" % sW); a("s_cbranch_scc1 %s" % lb)
            a("s_waitcnt vmcnt(0)")
            a.label(lb)
        a("s_waitcnt vmcnt(1)")
        self.xstamp(3)
        def mlre(): a(ldm)
        self.poll_retry("ml", lambda: self.check_tags([M], t), mlre, sleep=self.o.get("osleep", 1), masked=bool(self.o.get("masked", 1)))
        self.xstamp(4)
        self.untag([M, M + 1])
        a("v_mov_b32 v%d, v%d" % (t, M)); a("s_nop 1")
        self.reduce8([t], "v_max_f32")
        a("s_mov_b32 s%d, 0x%08x" % (sT0, LOG2E))
        a("v_sub_f32 v%d, v%d, v%d" % (t, M, t)); a("v_mul_f32 v%d, s%d, v%d" % (t, sT0, t))
        a("v_exp_f32 v%d, v%d" % (t, t)); a("s_nop 0")
        a("v_mul_f32 v%d, v%d, v%d" % (t + 1, t, M + 1)); a("s_nop 1")
        self.reduce8([t + 1])
        a("v_rcp_f32 v%d, v%d" % (t + 1, t + 1)); a("s_nop 0")
        a("v_mul_f32 v%d, v%d, v%d" % (t + 2, t, t + 1))
        if not early: a("s_waitcnt vmcnt(0)")
        self.xstamp(5)
        if self.o.get("tdiag", 0): a("s_mov_b32 s%d, 0" % sSPIN)
        if self.o.get("pipe", 1):
            self.poll_pipe("o", lambda: self.check_tags([RL], t), lambda: a(ld), half_rtt=self.o.get("half", 8))
        else:
            self.poll_retry("o", lambda: self.check_tags([RL], t), lambda: a(ld), sleep=self.o.get("osleep", 1), masked=bool(self.o.get("masked", 1)))
        if self.o.get("tdiag", 0):
            a("s_waitcnt lgkmcnt(0)")
            a("s_mul_i32 s%d, s%d, 100" % (sT0, sSPIN))
            a("s_add_u32 s%d, s%d, s%d" % (sSTAMP + 12, sSTAMP, sT0)); a("s_addc_u32 s%d, s%d, 0" % (sSTAMP + 13, sSTAMP + 1))
        self.tstamp(11)
        for k in range(4): a("v_and_b32 v%d, 0xffffff00, v%d" % (R + k, RL + k))
        for k in range(4): a("v_mul_f32 v%d, v%d, v%d" % (R + k, t + 2, R + k))
        self.reduce8([R, R + 1, R + 2, R + 3])
        A = vKD
        for r in range(4): self.build_A(A + 4 * r, R + r)
        WO = vKD + 48; DS = vKD + 44
        a("s_nop 1")
        for r in range(4):
            c = "0" if r == 0 else "v[%d:%d]" % (DS, DS + 3)
            a("v_mfma_f32_16x16x32_bf16 v[%d:%d], v[%d:%d], v[%d:%d], %s" % (DS, DS + 3, A + 4 * r, A + 4 * r + 3, WO + 4 * r, WO + 4 * r + 3, c))
        a("s_nop 7")
        self.exec_valid()
        a("ds_write_b128 v%d, v[%d:%d]" % (t + 9, DS, DS + 3))
        self.exec_all()
        self.lgkm0()
        self.xstamp(7)
        a("s_barrier")
        lab = a.newlabel("Lskip_s")
        a("s_cmp_eq_u32 s%d, 0" % sW); a("s_cbranch_scc0 %s" % lab)
        a("s_mul_i32 s%d, s%d, %d" % (sT3, sN, OUT2_STRIDE)); a("s_add_u32 s%d, s%d, 128" % (sT3, sT3))
        self.reduce16_publish(L_S, sT3, vX)
        self.tstamp(12)
        a.label(lab)
    def reduce16_publish(self, lbase, goff, R):
        a = self.a; t = vT
        a("v_and_b32 v%d, 3, v%d" % (t, vL)); a("v_lshlrev_b32 v%d, 10, v%d" % (t, t))
        a("v_lshrrev_b32 v%d, 2, v%d" % (t + 1, vL))
        a("v_lshl_add_u32 v%d, v%d, 4, v%d" % (t, t + 1, t))
        for k in range(4): a("ds_read_b128 v[%d:%d], v%d offset:%d" % (R + 4 * k, R + 4 * k + 3, t, lbase + 256 * k))
        a("v_lshlrev_b32 v%d, 4, v%d" % (t + 1, t + 1)); a("v_add_u32 v%d, s%d, v%d" % (t + 1, goff, t + 1))
        self.lgkm0()
        for k in (0, 2):
            self.pk_add(R + k, R + k, R + 4 + k); self.pk_add(R + 8 + k, R + 8 + k, R + 12 + k)
        for k in (0, 2): self.pk_add(R + k, R + k, R + 8 + k)
        a("s_nop 0")
        for m in ("quad_perm:[1,0,3,2]", "quad_perm:[2,3,0,1]"):
            for k in range(4): a("v_add_f32_dpp v%d, v%d, v%d %s%s" % (R + k, R + k, R + k, m, DPP_ALL))
        self.tagit([R, R + 1, R + 2, R + 3])
        self.exec_set(0x11111111, 0x11111111)
        a("global_store_dwordx4 v%d, v[%d:%d], s[%d:%d] sc1" % (t + 1, R, R + 3, sOUT2, sOUT2 + 1))
        self.exec_all()
    def final(self):
        a = self.a; t = vT
        lab = a.newlabel("Lskip_fin")
        if not self.o.get("finall", 0):
            a("s_cmp_eq_u32 s%d, 0" % sW); a("s_cbranch_scc0 %s" % lab)
        a("s_cmp_lt_u32 s%d, 250" % sN); a("s_cbranch_scc0 %s" % lab)
        a("s_sub_u32 s%d, s%d, 240" % (sT3, sN))
        a("v_lshrrev_b32 v%d, 4, v%d" % (t, vL))
        a("v_mul_u32_u24 v%d, %d, v%d" % (t, 10 * OUT2_STRIDE, t))
        a("v_and_b32 v%d, 15, v%d" % (t + 1, vL))
        a("v_lshl_add_u32 v%d, v%d, 4, v%d" % (t, t + 1, t))
        a("s_mul_i32 s%d, s%d, %d" % (sT0, sT3, OUT2_STRIDE))
        a("v_add_u32 v%d, s%d, v%d" % (t, sT0, t))
        AD = vKD
        for i in range(6): a("v_add_u32 v%d, %d, v%d" % (AD + i, i * 40 * OUT2_STRIDE, t))
        RF = vKD + 8; RS = vKD + 32
        a("s_lshl_b32 s%d, s%d, 7" % (sT0, sT3))
        a("v_lshl_add_u32 v%d, v%d, 3, s%d" % (t + 2, t + 1, sT0))
        XR = vKD + 56
        a("global_load_dwordx2 v[%d:%d], v%d, s[%d:%d]" % (XR, XR + 1, t + 2, sX, sX + 1))
        def loads(R, off):
            for i in range(6):
                a("global_load_dwordx4 v[%d:%d], v%d, s[%d:%d] offset:%d sc1" % (R + 4 * i, R + 4 * i + 3, AD + i, sOUT2, sOUT2 + 1, off))
        def check(R): self.check_tags([R + 4 * i for i in range(6)], t + 3)
        def total(R, masked=False):
            if not masked: self.untag([R + k for k in range(24)])
            for i in (1, 3, 5):
                for k in (0, 2): self.pk_add(R + 4 * (i - 1) + k, R + 4 * (i - 1) + k, R + 4 * i + k)
            for i in (2, 4):
                for k in (0, 2): self.pk_add(R + k, R + k, R + 4 * i + k)
            for sw in ("v_permlane16_swap_b32", "v_permlane32_swap_b32"):
                for k in range(4): a("v_mov_b32 v%d, v%d" % (R + 4 + k, R + k))
                a("s_nop 1")
                for k in range(4): a("%s v%d, v%d" % (sw, R + k, R + 4 + k))
                a("s_nop 1")
                for k in range(4): a("v_add_f32 v%d, v%d, v%d" % (R + k, R + k, R + 4 + k))
        loads(RF, 384)
        a("s_waitcnt vmcnt(0)")
        self.poll_retry("f", lambda: check(RF), lambda: loads(RF, 384))
        if not self.o.get("finall", 0): loads(RS, 128)
        total(RF)
        for k in range(4):
            self.round_bf16(RF + k, RF + k); self.silu(RF + k, RF + k, t + 5); self.round_bf16(RF + k, RF + k)
        a("v_lshlrev_b32 v%d, 16, v%d" % (t + 6, XR)); a("v_and_b32 v%d, 0xffff0000, v%d" % (t + 7, XR))
        a("v_lshlrev_b32 v%d, 16, v%d" % (t + 8, XR + 1)); a("v_and_b32 v%d, 0xffff0000, v%d" % (t + 9, XR + 1))
        if self.o.get("finall", 0):
            lp = a.newlabel("Lstag"); dn = a.newlabel("Lstagd")
            a("s_mov_b32 s%d, s%d" % (sT0, sW))
            a.label(lp)
            a("s_cmp_eq_u32 s%d, 0" % sT0); a("s_cbranch_scc1 %s" % dn)
            a("s_sleep %d" % self.o.get("stag", 2)); a("s_sub_u32 s%d, s%d, 1" % (sT0, sT0)); a("s_branch %s" % lp)
            a.label(dn)
            loads(RS, 128)
        a("s_waitcnt vmcnt(0)")
        if self.o.get("pipe", 1):
            self.poll_pipe("s", lambda: check(RS), lambda: loads(RS, 128), half_rtt=self.o.get("half", 8), nload=6)
        else:
            self.poll_retry("s", lambda: check(RS), lambda: loads(RS, 128), sleep=self.o.get("ssleep", 0))
        self.tstamp(13)
        RL = RS; RS = vKD + 60
        for k in range(24): a("v_and_b32 v%d, 0xffffff00, v%d" % (RS + k, RL + k))
        self.untagged = True
        total(RS, True)
        for k in range(4):
            self.round_bf16(RS + k, RS + k)
            a("v_mul_f32 v%d, v%d, v%d" % (RS + k, RS + k, RF + k))
            self.round_bf16(RS + k, RS + k)
            a("v_add_f32 v%d, v%d, v%d" % (RS + k, RS + k, t + 6 + k))
        a("v_cvt_pk_bf16_f32 v%d, v%d, v%d" % (t + 10, RS, RS + 1))
        a("v_cvt_pk_bf16_f32 v%d, v%d, v%d" % (t + 11, RS + 2, RS + 3))
        a("s_mov_b64 exec, 0xffff")
        a("global_store_dwordx2 v%d, v[%d:%d], s[%d:%d]" % (t + 2, t + 10, t + 11, sOUT, sOUT + 1))
        if self.o.get("dbgtime", 0):
            a("s_memrealtime s[98:99]")
            a("s_waitcnt lgkmcnt(0)")
            a("s_sub_u32 s98, s98, s96")
            a("s_sub_u32 s99, s%d, 240" % sN); a("s_lshl_b32 s99, s99, 2")
            a("s_mov_b64 exec, 1")
            a("v_mov_b32 v%d, s99" % (t + 12)); a("v_mov_b32 v%d, s98" % (t + 13))
            a("global_store_dword v%d, v%d, s[%d:%d]" % (t + 12, t + 13, sDBG, sDBG + 1))
        lab2 = a.newlabel("Lskip_ep")
        a("s_cmp_eq_u32 s%d, 240" % sN); a("s_cbranch_scc0 %s" % lab2)
        a("s_cmp_eq_u32 s%d, 0" % sW); a("s_cbranch_scc0 %s" % lab2)
        a("s_mov_b64 exec, 1")
        a("v_mov_b32 v%d, 0x%x" % (t + 12, WS_EPOCH)); a("v_mov_b32 v%d, s%d" % (t + 13, sE))
        a("global_store_dword v%d, v%d, s[%d:%d]" % (t + 12, t + 13, sWS, sWS + 1))
        a.label(lab2)
        self.exec_all()
        self.tstamp(14)
        a.label(lab)
    def write_stamps(self):
        if not self.stamps: return
        a = self.a
        lab = a.newlabel("Lskip_st")
        if not self.o.get("stamp_all", 0):
            a("s_cmp_eq_u32 s%d, %d" % (sW, self.o.get("stamp_wave", 0))); a("s_cbranch_scc0 %s" % lab)
        self.stamp(15)
        self.lgkm0()
        a("s_add_u32 s%d, s%d, 0x%x" % (sWS, sWS, STAMP_OFF)); a("s_addc_u32 s%d, s%d, 0" % (sWS + 1, sWS + 1))
        if self.o.get("stamp_all", 0):
            a("s_lshl_b32 s%d, s%d, 3" % (sT0, sN)); a("s_add_u32 s%d, s%d, s%d" % (sT0, sT0, sW)); a("s_lshl_b32 s%d, s%d, 7" % (sT0, sT0))
        else:
            a("s_lshl_b32 s%d, s%d, 7" % (sT0, sN))
        a("v_mov_b32 v%d, s%d" % (vT, sT0))
        a("s_mov_b64 exec, 1")
        for k in range(0, 16, 2):
            for q in range(4): a("v_mov_b32 v%d, s%d" % (vT + 4 + q, sSTAMP + 2 * k + q))
            a("global_store_dwordx4 v%d, v[%d:%d], s[%d:%d] offset:%d" % (vT, vT + 4, vT + 7, sWS, sWS + 1, 8 * k))
            a("s_nop 1")
        a.label(lab)
    def attention(self, hK, hV, after_issue=None):
        a = self.a
        self.await_cnt(1, 4)
        self.read_qf()
        self.wait(hK[11]); self.qk_groups([0, 1, 2, 3])
        self.wait(hK[23]); self.qk_groups([4, 5, 6, 7])
        self.softmax()
        self.stamp(8)
        self.build_PA()
        for g in range(7):
            self.wait(hV[3 * g + 2]); self.pv_group(g)

    def streamer(self, normal):
        a = self.a; o = self.o
        DS = o.get("ds", 6)
        NB = o.get("nb0", 6)
        self.ops = [None] * NB
        hs = list(range(NB))
        self.b0()
        if o.get("sdiag", 0):
            self.stamp(4)
            self.wait(hs[0]); self.stamp(5)
        self.epoch_load()
        if o.get("pf", 1): self.code_prefetch(vX)
        items = [("K", i) for i in range(NB, 24)] + [("V", i) for i in range(24)]
        for k, (m, i) in enumerate(items):
            n = len(hs)
            if DS and n - DS >= 0: self.wait(hs[n - DS])
            hs.append(self.kv_load(m, i))
            if o.get("prog", 0) and n in (14, 22, 30): self.stamp({14: 2, 22: 3, 30: 4}[n])
            if n == max(4, NB):
                self.consts()
                if o.get("pretouch", 0):
                    t = vT
                    self.lgkm0()
                    a("s_add_u32 s%d, s%d, 2" % (sT0, sE)); a("s_and_b32 s%d, s%d, 0xff" % (sT0, sT0))
                    for k in range(4): a("v_mov_b32 v%d, s%d" % (t + 4 + k, sT0))
                    a("s_lshl_b32 s%d, s%d, 3" % (sT0, sH)); a("s_add_u32 s%d, s%d, s%d" % (sT0, sT0, sJ)); a("s_mul_i32 s%d, s%d, 768" % (sT0, sT0))
                    a("v_lshl_add_u32 v%d, v%d, 4, s%d" % (t, vL, sT0))
                    a("s_mul_i32 s%d, s%d, %d" % (sT1, sN, OUT2_STRIDE))
                    a("v_lshl_add_u32 v%d, v%d, 4, s%d" % (t + 1, vL, sT1))
                    lab = a.newlabel("Lpt")
                    a("s_cmp_eq_u32 s%d, 0" % sW); a("s_cbranch_scc0 %s" % lab)
                    self.exec_set(0xffffffff, 0x0000ffff)
                    self.vm("global_store_dwordx4 v%d, v[%d:%d], s[%d:%d] sc1" % (t, t + 4, t + 7, sO, sO + 1), "pt")
                    self.exec_set(0xffffff00, 0x000000ff)
                    self.vm("global_store_dwordx4 v%d, v[%d:%d], s[%d:%d] sc1" % (t + 1, t + 4, t + 7, sOUT2, sOUT2 + 1), "pt")
                    self.exec_all()
                    a.label(lab)
        hK = hs[:24]; hV = hs[24:]
        self.stamp(1)
        if o.get("so", 0):
            if normal:
                self.wo_base(); self.wo_loads()
            a("s_waitcnt vmcnt(0)")
            self.stamp(9)
            return
        self.lgkm0()
        self.epoch_finish()
        if normal: self.wo_base()
        self.attention(hK, hV)
        self.wait(hV[23]); self.pv_group(7)
        self.stamp(9)
        self.wg_factor()
        self.pv_stage(scale=True)
        if normal and o.get("wo_mode", 1) in (1, 2):
            self.await_cnt(4, 4)
            a("s_setprio 3")
            self.wo_loads()
        if normal and o.get("early", 0): self.hop1_first(False)
        a("s_setprio 1")

    def b0(self):
        a = self.a
        a("v_mov_b32 v%d, %d\nv_mov_b32 v%d, 0\nv_mov_b32 v%d, 0\nv_mov_b32 v%d, 0\nv_mov_b32 v%d, 0" % (vT + 8, L_CNT, vT + 10, vT + 11, vT + 12, vT + 13))
        a("s_mov_b64 exec, 1")
        a("ds_write_b128 v%d, v[%d:%d]" % (vT + 8, vT + 10, vT + 13))
        a("ds_write_b128 v%d, v[%d:%d] offset:16" % (vT + 8, vT + 10, vT + 13))
        self.exec_all()
        a("s_waitcnt lgkmcnt(0)")
        a("s_barrier")

    def worker(self, normal):
        a = self.a; o = self.o; t = vT
        self.ops = []
        a("s_sub_u32 s%d, s%d, 4" % (sWW, sW))
        PQ = vVD; PD = vVD + 48; WD = vVD + 88; DF = vVD + 84
        NE = o.get("ne", 12) if normal else o.get("ne_l", 8)
        hK = []
        nt = self.nt
        def gl(reg, va, sb, off=0): return self.vm("global_load_dwordx4 v[%d:%d], v%d, s[%d:%d] offset:%d %s" % (reg, reg + 3, va, sb, sb + 1, off, nt))
        if normal:
            a("s_mul_i32 s%d, s%d, 205" % (sCT, sN)); a("s_lshr_b32 s%d, s%d, 10" % (sCT, sCT))
            a("s_mul_i32 s%d, s%d, 5" % (sRB5, sCT)); a("s_sub_u32 s%d, s%d, s%d" % (sRB5, sN, sRB5))
            a("s_cmp_lt_u32 s%d, 40" % sCT)
            a("s_cselect_b32 s%d, s%d, s%d" % (sPB, sWG, sWU)); a("s_cselect_b32 s%d, s%d, s%d" % (sPB + 1, sWG + 1, sWU + 1))
            a("s_cselect_b32 s%d, 32, 40" % sT1)
            a("s_cmp_lt_u32 s%d, 32" % sCT)
            a("s_cselect_b32 s%d, s%d, s%d" % (sPB, sWQ, sPB)); a("s_cselect_b32 s%d, s%d, s%d" % (sPB + 1, sWQ + 1, sPB + 1))
            a("s_cselect_b32 s%d, 0, s%d" % (sT1, sT1))
            a("s_cselect_b32 s%d, 2, 0" % sSTR); a("s_lshl_b32 s%d, 3072, s%d" % (sSTR, sSTR))
            a("s_sub_u32 s%d, s%d, s%d" % (sT1, sCT, sT1)); a("s_mul_i32 s%d, s%d, 384" % (sT1, sT1))
            a("s_lshl_b32 s%d, s%d, 2" % (sT0, sRB5)); a("s_add_u32 s%d, s%d, s%d" % (sT0, sT0, sWW))
            a("s_lshl_b32 s%d, s%d, 5" % (sT0, sT0))
            a("s_mul_i32 s%d, s%d, s%d" % (sT2, sT0, sSTR)); a("s_add_u32 s%d, s%d, s%d" % (sT1, sT1, sT2))
            a("s_add_u32 s%d, s%d, s%d" % (sPB, sPB, sT1)); a("s_addc_u32 s%d, s%d, 0" % (sPB + 1, sPB + 1))
            a("v_mul_u32_u24 v%d, s%d, v%d" % (vX + 8, sSTR, vL8))
            a("v_lshl_add_u32 v%d, v%d, 4, v%d" % (vX + 8, vL7, vX + 8))
            a("s_lshl_b32 s%d, s%d, 3" % (sSTR, sSTR))
            a("v_lshlrev_b32 v%d, 2, v%d" % (t, vL))
            for k in range(5): hx = self.vm("global_load_dword v%d, v%d, s[%d:%d] offset:%d" % (vX + k, t, sX, sX + 1, 256 * k))
            a("v_add_u32 v%d, s%d, v%d" % (t + 1, sT0, vL8)); a("v_lshlrev_b32 v%d, 1, v%d" % (t + 1, t + 1))
            for g in range(4):
                hx = self.vm("global_load_ushort v%d, v%d, s[%d:%d] offset:%d" % (vQF + g, t + 1, sX, sX + 1, 16 * g))
            hlast = None
            for g in range(4):
                if g: a("v_add_u32 v%d, s%d, v%d" % (vX + 8, sSTR, vX + 8))
                for tt in range(3): hlast = gl(PQ + 12 * g + 4 * tt, vX + 8, sPB, 128 * tt)
                if g == 0:
                    self.b0()
                    self.epoch_load()
            a("s_lshl_b32 s%d, s%d, 2" % (sT1, sCG)); a("s_add_u32 s%d, s%d, s%d" % (sT1, sT1, sWW))
            a("s_mul_i32 s%d, s%d, %d" % (sT2, sT1, 16 * 1280)); a("s_lshl_b32 s%d, s%d, 7" % (sT3, sRB))
            a("s_add_u32 s%d, s%d, s%d" % (sT2, sT2, sT3))
            a("s_add_u32 s%d, s%d, s%d" % (sWD, sWD, sT2)); a("s_addc_u32 s%d, s%d, 0" % (sWD + 1, sWD + 1))
            self.stamp(1)
            if o.get("so", 0):
                a("v_mul_u32_u24 v%d, 1280, v%d" % (vX + 10, vL8))
                a("v_lshl_add_u32 v%d, v%d, 4, v%d" % (vX + 10, vL7, vX + 10))
                gl(WD, vX + 10, sWD)
                a("v_add_u32 v%d, %d, v%d" % (vX + 10, 8 * 1280, vX + 10))
                gl(WD + 4, vX + 10, sWD)
                self.wo_base()
                if o.get("so", 0) == 2:
                    a("s_waitcnt vmcnt(0)")
                    for _ in range(7): a("s_sleep 16")
                a("s_setprio %d" % o.get("prio_w", 1))
                for i in range(24): self.kv_load("K", i)
                for i in range(24): self.kv_load("V", i)
                self.stamp(8)
                self.wo_loads()
                a("s_waitcnt vmcnt(0)")
                self.stamp(9)
                return
            self.consts()
            A = [vSC, vSC + 4, vQF + 4, vQF + 8]
            self.layernorm(hx, [(vQF + g, vKD + 80 + g) for g in range(4)])
            for g in range(4): self.build_A(A[g], vKD + 80 + g)
            self.stamp(2)
            self.phaseq(hlast, A, PQ, PD)
            a("v_mul_u32_u24 v%d, 1280, v%d" % (vX + 10, vL8))
            a("v_lshl_add_u32 v%d, v%d, 4, v%d" % (vX + 10, vL7, vX + 10))
            gl(WD, vX + 10, sWD)
            a("v_add_u32 v%d, %d, v%d" % (vX + 10, 8 * 1280, vX + 10))
            gl(WD + 4, vX + 10, sWD)
            self.wo_base()
            hK += [self.kv_load("K", i) for i in range(NE)]
        else:
            hK += [self.kv_load("K", i) for i in range(2)]
            self.b0()
            self.epoch_load()
            hK += [self.kv_load("K", i) for i in range(2, NE)]
            self.stamp(1)
            if o.get("so", 0):
                for i in range(NE, 24): self.kv_load("K", i)
                for i in range(24): self.kv_load("V", i)
                a("s_waitcnt vmcnt(0)")
                self.stamp(9)
                return
            self.consts()
            self.lgkm0()
            self.epoch_finish()
        self.q_addrs(normal)
        for _ in range(o.get("qdelay", 0)): a("s_sleep 16")
        self.q_loads(normal)
        a("s_waitcnt vmcnt(0)")
        self.poll_retry("q", lambda: self.q_check(normal), lambda: self.q_loads(normal), sleep=o.get("qsleep", 2))
        self.stamp(6)
        self.ops = []
        self.q_reduce(normal, WD, DF)
        a("s_setprio %d" % o.get("prio_w", 1))
        KQ = o.get("kq", 10)
        self.dstamp(2)
        hK = [-1] * NE + [self.kv_load("K", i) for i in range(NE, 24)]
        self.dstamp(11)
        hV = [self.kv_load("V", i) for i in range(KQ)]
        self.dstamp(12)
        def W(h):
            if h >= 0: self.wait(h)
        if normal:
            lab = a.newlabel("Lskip_f")
            a("s_cmp_eq_u32 s%d, 4" % sW); a("s_cbranch_scc0 %s" % lab)
            self.f_publish()
            a.label(lab)
        self.await_cnt(1, 4)
        self.read_qf()
        W(hK[11]); self.dstamp(13); self.qk_groups([0, 1, 2, 3])
        hV += [self.kv_load("V", i) for i in range(KQ, KQ + 2)]
        W(hK[23]); self.dstamp(14); self.qk_groups([4, 5, 6, 7])
        hV += [self.kv_load("V", i) for i in range(KQ + 2, KQ + 4)]
        self.softmax()
        self.stamp(8)
        hV += [self.kv_load("V", i) for i in range(KQ + 4, 24)]
        self.dstamp(3)
        if normal and o.get("wo_mode", 1) in (1, 2, 3):
            if o.get("wo_mode", 1) != 3: self.arrive(4)
            if o.get("wo_mode", 1) in (1, 3): self.wo_loads()
        if normal and o.get("early", 0): self.hop1_first(True)
        self.dstamp(4)
        self.wg_factor()
        for g in range(8): a("v_mul_f32 v%d, v%d, v%d" % (vSC + g, vFAC, vSC + g))
        self.build_PA()
        for g in range(8):
            self.wait(hV[3 * g + 2]); self.pv_group(g)
        self.stamp(9)
        self.pv_stage(scale=False)

    def run_path(self, normal):
        a = self.a
        tag = "n" if normal else "l"
        a("s_cmp_ge_u32 s%d, 4" % sW)
        a("s_cbranch_scc1 L_worker_%s" % tag)
        self.streamer(normal)
        a("s_branch L_tail_%s" % tag)
        a.label("L_worker_%s" % tag)
        self.worker(normal)
        a.label("L_tail_%s" % tag)
        if self.o.get("so", 0):
            a("s_barrier")
            self.stamp(10)
            a("s_waitcnt lgkmcnt(0)")
            a("s_getreg_b32 s%d, hwreg(HW_REG_XCC_ID)" % sT0)
            a("s_and_b32 s%d, s%d, 15" % (sT0, sT0))
            a("s_add_u32 s%d, s%d, 1" % (sT0, sT0))
            a("s_mul_i32 s%d, s%d, 100" % (sT0, sT0))
            a("s_add_u32 s%d, s%d, s%d" % (sSTAMP + 28, sSTAMP, sT0)); a("s_addc_u32 s%d, s%d, 0" % (sSTAMP + 29, sSTAMP + 1))
            self.write_stamps()
            return
        self.tail_publish_o()
        self.xstamp(1)
        wm = self.o.get("wo_mode", 1)
        if normal and wm == 0: self.wo_loads()
        if normal and wm in (2, 3):
            lab = a.newlabel("Lwo2")
            a("s_cmp_ge_u32 s%d, 4" % sW); a("s_cbranch_scc%d %s" % (0 if wm == 2 else 1, lab))
            self.wo_loads()
            a.label(lab)
        self.xstamp(2)
        if normal: self.hop1_wo()
        else: self.final()
        self.write_stamps()

    def generate(self):
        a = self.a
        self.prologue()
        if self.stamps:
            for k in range(1, 16): a("s_mov_b64 s[%d:%d], 0" % (sSTAMP + 2 * k, sSTAMP + 2 * k + 1))
        a("s_cmp_ge_u32 s%d, 240" % sN)
        a("s_cbranch_scc1 L_light")
        self.run_path(True)
        a("s_endpgm")
        a.label("L_light")
        self.run_path(False)
        a.label("L_end")
        body = a.text()
        lf = self.o.get("ldflag", 0); sf = self.o.get("stflag", 0)
        names = {0: "sc1", 1: "sc0 sc1", 2: "sc1 nt", 3: "sc0 sc1 nt"}
        out = []
        for line in body.split("\n"):
            if line.rstrip().endswith(" sc1") and "global_load" in line: line = line.rstrip()[:-3] + names[lf]
            elif line.rstrip().endswith(" sc1") and "global_store" in line: line = line.rstrip()[:-3] + names[sf]
            out.append(line)
        txt = wrap("\n".join(out), 256, 512, LDS_BYTES, vgpr=256, sgpr=100)
        return txt.replace("    s_endpgm\n.section", "    s_endpgm\nL_codeend:\n.section")

if __name__ == "__main__":
    import argparse
    ap = argparse.ArgumentParser()
    ap.add_argument("-o", default="k.s"); ap.add_argument("--D", type=int, default=3)
    ap.add_argument("--stamps", action="store_true"); ap.add_argument("--nt", default="nt")
    ap.add_argument("--mapping", default="lin"); ap.add_argument("--normp", action="store_true")
    ap.add_argument("--opt", action="append", default=[])
    args = ap.parse_args()
    opts = {}
    for kv in args.opt:
        k, v = kv.split("="); opts[k] = int(v)
    open(args.o, "w").write(Gen(args.D, args.stamps, args.nt, args.mapping, args.normp, opts).generate())
```

```python
import struct, sys
from asmlib import *

def f2u(x): return struct.unpack("<I", struct.pack("<f", x))[0]
SCALE = f2u(192 ** -0.5); LOG2E = f2u(1.4426950408889634); INV640 = f2u(1.0 / 640.0); EPS = f2u(1e-5)

WS_QP = 0x00000; QP_STRIDE = 768
WS_O = 0x80000
WS_OUT2 = 0xB0000; OUT2_STRIDE = 640
WS_EPOCH = 0xE0000
STAMP_OFF = 128 << 20
L_STG = 0
L_Q = 24576
L_F = 25088
L_S = 29184
L_CNT = 33280
L_ML = 33312
LDS_BYTES = 33408
sX, sK, sV, sWQ, sWO, sBX, sWG, sWU, sWD, sOUT, sDBG, sWS = 4, 6, 8, 10, 12, 14, 16, 18, 20, 22, 24, 26
sW = 3
sCG, sRB, sH, sJ = 28, 29, 30, 31
sT0, sT1, sT2, sT3 = 32, 33, 34, 35
sM0 = 36
sSPIN = 44
sMW, sLW, sMG, sLG = 45, 46, 47, 48
sO = 54; sOUT2 = 56
sE, sTAG4 = 58, 59
sWW = 49
sPB = 50
sSTR = 52
sCT, sRB5 = 53, 14
sN = 15
sSTAMP = 60
sSELA, sSELB, sSELC, sTAG = 92, 93, 94, 95
vL, vKO, vL8, vL7, vLDSW, vFF, vFAC = 1, 2, 3, 4, 5, 6, 7
vM = 8; vQF = 12; vSC = 24; vT = 32; vKD = 48; vVD = 144; vX = 240

DPP_ALL = " row_mask:0xf bank_mask:0xf"

class Gen:
    def __init__(self, D=3, stamps=False, nt="nt", mapping="lin", norm_p=False, opts=None):
        self.a = Asm(); self.D = D; self.stamps = stamps; self.nt = nt
        self.mapping = mapping; self.norm_p = norm_p; self.o = opts or {}
        self.ops = []
    def vm(self, text, role=None):
        self.a(text); self.ops.append(role); return len(self.ops) - 1
    def wait(self, h, role=None):
        n = sum(1 for r in self.ops[h + 1:] if r is None or (role is not None and r == role))
        assert n <= 63
        self.a("s_waitcnt vmcnt(%d)" % n)
    def stamp(self, k):
        if self.stamps and self.o.get("mini", 0) and k not in (0, 10, 14, 15): return
        if self.stamps: self.a("s_memrealtime s[%d:%d]" % (sSTAMP + 2 * k, sSTAMP + 2 * k + 1))
    def dstamp(self, k):
        if self.o.get("diag", 0): self.stamp(k)
    def xstamp(self, k):
        if self.o.get("tdiag", 0): self.stamp(k)
    def tstamp(self, k):
        if not self.o.get("diag", 0): self.stamp(k)
    def lgkm0(self): self.a("s_waitcnt lgkmcnt(0)")
    def exec_set(self, lo, hi): self.a("s_mov_b32 exec_lo, 0x%08x\ns_mov_b32 exec_hi, 0x%08x" % (lo, hi))
    def exec_valid(self): self.exec_set(0x00ff00ff, 0xff00ff00)
    def exec_all(self): self.a("s_mov_b64 exec, -1")
    def allreduce_sgpr(self, v, op, sdst):
        a = self.a
        for m in ("quad_perm:[1,0,3,2]" + DPP_ALL, "quad_perm:[2,3,0,1]" + DPP_ALL, "row_half_mirror" + DPP_ALL, "row_mirror" + DPP_ALL,
                  "row_bcast:15 row_mask:0xa bank_mask:0xf", "row_bcast:31 row_mask:0xc bank_mask:0xf"):
            a("s_nop 1"); a("%s_dpp v%d, v%d, v%d %s" % (op, v, v, v, m))
        a("s_nop 1"); a("v_readlane_b32 s%d, v%d, 63" % (sdst, v)); a("s_nop 1")
    def slots_reduce_sgpr(self, v, op, sdst):
        a = self.a
        for m in ("row_ror:8" + DPP_ALL, "row_bcast:15 row_mask:0xa bank_mask:0xf", "row_bcast:31 row_mask:0xc bank_mask:0xf"):
            a("s_nop 1"); a("%s_dpp v%d, v%d, v%d %s" % (op, v, v, v, m))
        a("s_nop 1"); a("v_readlane_b32 s%d, v%d, 63" % (sdst, v)); a("s_nop 1")
    def reduce8(self, regs, op="v_add_f32"):
        a = self.a
        for m in ("quad_perm:[1,0,3,2]", "quad_perm:[2,3,0,1]", "row_half_mirror"):
            if len(regs) < 3: a("s_nop %d" % (2 - len(regs)))
            for r in regs: a("%s_dpp v%d, v%d, v%d %s%s" % (op, r, r, r, m, DPP_ALL))
    def round_bf16(self, dst, src):
        self.a("v_cvt_pk_bf16_f32 v%d, v%d, v%d" % (dst, src, src))
        self.a("v_and_b32 v%d, 0xffff0000, v%d" % (dst, dst))
    def build_A(self, d, src):
        a = self.a
        a("v_cvt_pk_bf16_f32 v%d, v%d, v%d" % (d + 3, src, src))
        for v in range(3): a("v_and_b32 v%d, v%d, v%d" % (d + v, d + 3, vM + v))
        a("v_and_b32 v%d, v%d, v%d" % (d + 3, d + 3, vM + 3))
    def silu(self, dst, src, t):
        a = self.a
        a("v_mul_f32 v%d, 0x%08x, v%d" % (t, LOG2E ^ 0x80000000, src))
        a("v_exp_f32 v%d, v%d" % (t, t)); a("s_nop 0")
        a("v_add_f32 v%d, 1.0, v%d" % (t, t))
        a("v_rcp_f32 v%d, v%d" % (t, t)); a("s_nop 0")
        a("v_mul_f32 v%d, v%d, v%d" % (dst, src, t))
    def pk_add(self, d, x, y):
        self.a("v_pk_add_f32 v[%d:%d], v[%d:%d], v[%d:%d]" % (d, d + 1, x, x + 1, y, y + 1))
    def tagit(self, regs):
        for r in regs: self.a("v_bfi_b32 v%d, v%d, s%d, v%d" % (r, vFF, sTAG, r))
    def untag(self, regs):
        for r in regs: self.a("v_and_b32 v%d, 0xffffff00, v%d" % (r, r))
    def gather_tags(self, dst, r):
        a = self.a
        a("v_perm_b32 v%d, v%d, v%d, s%d" % (dst, r + 1, r, sSELA))
        a("v_perm_b32 v%d, v%d, v%d, s%d" % (dst, r + 2, dst, sSELB))
        a("v_perm_b32 v%d, v%d, v%d, s%d" % (dst, r + 3, dst, sSELC))
    def check_tags(self, granules, t):
        a = self.a
        self.gather_tags(t, granules[0])
        if len(granules) == 1:
            a("v_cmp_ne_u32 vcc, s%d, v%d" % (sTAG4, t)); return
        a("v_xor_b32 v%d, s%d, v%d" % (t, sTAG4, t))
        for r in granules[1:]:
            self.gather_tags(t + 1, r)
            a("v_xor_b32 v%d, s%d, v%d" % (t + 1, sTAG4, t + 1))
            a("v_or_b32 v%d, v%d, v%d" % (t, t, t + 1))
        a("v_cmp_ne_u32 vcc, 0, v%d" % t)
    def poll_retry(self, name, check_fn, reload_fn, sleep=2, masked=False):
        a = self.a
        ok = a.newlabel("Lok_" + name); re_ = a.newlabel("Lre_" + name)
        check_fn()
        a("s_cbranch_vccz %s" % ok)
        a.label(re_)
        a("s_add_u32 s%d, s%d, 1" % (sSPIN, sSPIN))
        a("s_cmp_gt_u32 s%d, 200000" % sSPIN)
        a("s_cbranch_scc1 %s" % ok)
        if sleep: a("s_sleep %d" % sleep)
        if masked: a("s_mov_b64 exec, vcc")
        reload_fn()
        if masked: self.exec_all()
        a("s_waitcnt vmcnt(0)")
        check_fn()
        a("s_cbranch_vccnz %s" % re_)
        a.label(ok)
    def poll_pipe(self, name, check_fn, load_fn, half_rtt=8, nload=1):
        a = self.a
        ok = a.newlabel("Lok_" + name); lp = a.newlabel("Llp_" + name)
        check_fn()
        a("s_cbranch_vccz %s" % ok)
        a("s_mov_b64 exec, vcc"); load_fn(); self.exec_all()
        a("s_sleep %d" % half_rtt)
        a.label(lp)
        a("s_add_u32 s%d, s%d, 1" % (sSPIN, sSPIN))
        a("s_cmp_gt_u32 s%d, 400000" % sSPIN)
        a("s_cbranch_scc1 %s" % ok)
        a("s_mov_b64 exec, vcc"); load_fn(); self.exec_all()
        a("s_waitcnt vmcnt(%d)" % nload)
        check_fn()
        a("s_cbranch_vccnz %s" % lp)
        a.label(ok)
    def prologue(self):
        a = self.a
        a("s_load_dwordx16 s[4:19], s[0:1], 0")
        a("s_load_dwordx8 s[20:27], s[0:1], 64")
        self.stamp(0)
        if self.o.get("dbgtime", 0): a("s_memrealtime s[96:97]")
        a("s_cmp_ge_u32 s2, 256")
        a("s_cbranch_scc1 L_end")
        a("v_lshrrev_b32 v%d, 6, v0" % vT)
        a("v_and_b32 v%d, 63, v0" % vL)
        a("v_readfirstlane_b32 s%d, v%d" % (sW, vT))
        a("v_lshrrev_b32 v%d, 3, v%d" % (vL8, vL))
        a("v_and_b32 v%d, 7, v%d" % (vL7, vL))
        a("v_mul_u32_u24 v%d, 384, v%d" % (vKO, vL8))
        a("v_lshl_add_u32 v%d, v%d, 4, v%d" % (vKO, vL7, vKO))
        assert self.mapping == "lin"
        a("s_lshl_b32 s%d, s2, 3" % sT0)
        a("s_add_u32 s%d, s%d, s%d" % (sT0, sT0, sW))
        a("s_mul_i32 s%d, s%d, 24576" % (sT0, sT0))
        a("s_cmp_ge_u32 s%d, 4" % sW)
        a("s_waitcnt lgkmcnt(0)")
        a("s_cbranch_scc1 L_pro_w")
        a("s_add_u32 s%d, s%d, s%d" % (sK, sK, sT0)); a("s_addc_u32 s%d, s%d, 0" % (sK + 1, sK + 1))
        self.ops = []
        a("s_setprio %d" % self.o.get("prio_s", 2))
        self.first_hs = [self.kv_load("K", i) for i in range(self.o.get("nb0", 6))]
        a("s_branch L_pro_j")
        a.label("L_pro_w")
        a("s_setprio 3")
        a("s_add_u32 s%d, s%d, s%d" % (sK, sK, sT0)); a("s_addc_u32 s%d, s%d, 0" % (sK + 1, sK + 1))
        a.label("L_pro_j")
        a("s_add_u32 s%d, s%d, s%d" % (sV, sV, sT0)); a("s_addc_u32 s%d, s%d, 0" % (sV + 1, sV + 1))
        a("s_lshr_b32 s%d, s2, 3" % sH)
        a("s_and_b32 s%d, s2, 7" % sJ)
        if self.o.get("lightodd", 1):
            a("s_sub_u32 s%d, s2, 224" % sT1)
            a("s_lshr_b32 s%d, s%d, 1" % (sT2, sT1))
            a("s_and_b32 s%d, s%d, 1" % (sT1, sT1)); a("s_lshl_b32 s%d, s%d, 4" % (sT1, sT1))
            a("s_add_u32 s%d, s%d, s%d" % (sT2, sT2, sT1)); a("s_add_u32 s%d, s%d, 224" % (sT2, sT2))
            a("s_cmp_lt_u32 s2, 224")
            a("s_cselect_b32 s%d, s2, s%d" % (sN, sT2))
        else:
            a("s_mov_b32 s%d, s2" % sN)
        a("s_mul_i32 s%d, s%d, 205" % (sCG, sN))
        a("s_lshr_b32 s%d, s%d, 11" % (sCG, sCG))
        a("s_mul_i32 s%d, s%d, 10" % (sRB, sCG))
        a("s_sub_u32 s%d, s%d, s%d" % (sRB, sN, sRB))
        a("s_mov_b32 s%d, 0" % sSPIN)
    def kv_load(self, which, i):
        a = self.a
        base = sK if which == "K" else sV
        reg = (vKD if which == "K" else vVD) + 4 * i
        grp, t = divmod(i, 3)
        ki = self.o.get("kvint", 0)
        if ki:
            if grp > 0 and t == 0:
                a("s_add_u32 s%d, s%d, %d" % (base, base, 196608 if ki == 1 else 24576)); a("s_addc_u32 s%d, s%d, 0" % (base + 1, base + 1))
            off = t * 128
        else:
            if grp > 0 and grp % 2 == 0 and t == 0:
                a("s_add_u32 s%d, s%d, 6144" % (base, base)); a("s_addc_u32 s%d, s%d, 0" % (base + 1, base + 1))
            off = (grp % 2) * 3072 + t * 128
        return self.vm("global_load_dwordx4 v[%d:%d], v%d, s[%d:%d] offset:%d %s" % (reg, reg + 3, vKO, base, base + 1, off, self.nt))
    def consts(self):
        a = self.a
        a("v_and_b32 v%d, 1, v%d" % (vT, vL))
        a("v_lshlrev_b32 v%d, 4, v%d" % (vT, vT))
        a("v_mov_b32 v%d, 0xffff" % (vT + 1))
        a("v_lshlrev_b32 v%d, v%d, v%d" % (vT + 1, vT, vT + 1))
        a("v_bfe_u32 v%d, v%d, 1, 2" % (vT + 2, vL))
        for v in range(4): a("v_cmp_eq_u32 s[%d:%d], %d, v%d" % (sM0 + 2 * v, sM0 + 2 * v + 1, v, vT + 2))
        a("s_nop 0")
        for v in range(4): a("v_cndmask_b32 v%d, 0, v%d, s[%d:%d]" % (vM + v, vT + 1, sM0 + 2 * v, sM0 + 2 * v + 1))
        a("v_bfe_u32 v%d, v%d, 4, 1" % (vT, vL))
        a("v_lshlrev_b32 v%d, 4, v%d" % (vT, vT))
        a("v_lshl_add_u32 v%d, v%d, 5, v%d" % (vLDSW, vL7, vT))
        a("v_mov_b32 v%d, 0xff" % vFF)
        a("s_mov_b32 s%d, 0x0c0c0400" % sSELA)
        a("s_mov_b32 s%d, 0x0c040100" % sSELB)
        a("s_mov_b32 s%d, 0x04020100" % sSELC)
        a("s_add_u32 s%d, s%d, 0x%x" % (sO, sWS, WS_O)); a("s_addc_u32 s%d, s%d, 0" % (sO + 1, sWS + 1))
        a("s_add_u32 s%d, s%d, 0x%x" % (sOUT2, sWS, WS_OUT2)); a("s_addc_u32 s%d, s%d, 0" % (sOUT2 + 1, sWS + 1))
    def epoch_load(self):
        self.a("s_load_dword s%d, s[%d:%d], 0x%x" % (sE, sWS, sWS + 1, WS_EPOCH))
    def epoch_finish(self):
        a = self.a
        a("s_add_u32 s%d, s%d, 1" % (sE, sE))
        a("s_and_b32 s%d, s%d, 0xff" % (sTAG, sE))
        a("s_mul_i32 s%d, s%d, 0x01010101" % (sTAG4, sTAG))
    def tile_addr(self, dst, stride, base, colshift=0, sw=None):
        a = self.a
        a("v_lshrrev_b32 v%d, 5, v%d" % (dst, vL))
        a("s_lshl_b32 s%d, s%d, 1" % (sT0, sW if sw is None else sw))
        a("v_add_u32 v%d, s%d, v%d" % (dst, sT0, dst))
        a("v_mul_u32_u24 v%d, %d, v%d" % (dst, stride, dst))
        if colshift: a("v_lshl_add_u32 v%d, v%d, %d, v%d" % (dst, vLDSW, colshift, dst))
        else: a("v_add_u32 v%d, v%d, v%d" % (dst, dst, vLDSW))
        if base: a("v_add_u32 v%d, %d, v%d" % (dst, base, dst))
    def code_prefetch(self, dst):
        a = self.a
        a("s_getpc_b64 s[%d:%d]" % (sT0, sT1))
        lab = a.newlabel("Lpc"); a.label(lab)
        a("s_sub_u32 s%d, s%d, %s-%s" % (sT0, sT0, lab, KNAME))
        a("s_subb_u32 s%d, s%d, 0" % (sT1, sT1))
        a("s_lshr_b32 s%d, s2, 3" % sT2); a("s_and_b32 s%d, s%d, 7" % (sT2, sT2))
        a("s_lshl_b32 s%d, s%d, 2" % (sT2, sT2)); a("s_add_u32 s%d, s%d, s%d" % (sT2, sT2, sW))
        a("s_lshl_b32 s%d, s%d, 10" % (sT2, sT2))
        a("v_lshl_add_u32 v%d, v%d, 4, s%d" % (vT, vL, sT2))
        a("v_min_u32 v%d, L_codeend-%s-16, v%d" % (vT, KNAME, vT))
        return self.vm("global_load_dwordx4 v[%d:%d], v%d, s[%d:%d]" % (dst, dst + 3, vT, sT0, sT1))
    def layernorm(self, hx, own):
        a = self.a; t = vT
        self.wait(hx)
        u = vX + 6
        for k in range(5):
            a("v_lshlrev_b32 v%d, 16, v%d" % (u + 2 * k, vX + k))
            a("v_and_b32 v%d, 0xffff0000, v%d" % (u + 2 * k + 1, vX + k))
        a("v_add_f32 v%d, v%d, v%d" % (t, u, u + 1))
        for k in range(2, 10): a("v_add_f32 v%d, v%d, v%d" % (t, t, u + k))
        self.allreduce_sgpr(t, "v_add_f32", sT0)
        a("v_mov_b32 v%d, 0x%08x" % (t + 1, INV640))
        a("v_mul_f32 v%d, s%d, v%d" % (t + 2, sT0, t + 1))
        a("v_sub_f32 v%d, v%d, v%d" % (u, u, t + 2))
        a("v_mul_f32 v%d, v%d, v%d" % (t, u, u))
        for k in range(1, 10):
            a("v_sub_f32 v%d, v%d, v%d" % (u + k, u + k, t + 2))
            a("v_fmac_f32 v%d, v%d, v%d" % (t, u + k, u + k))
        self.allreduce_sgpr(t, "v_add_f32", sT0)
        a("v_mul_f32 v%d, s%d, v%d" % (t + 3, sT0, t + 1))
        self.round_bf16(t + 2, t + 2)
        self.round_bf16(t + 3, t + 3)
        a("v_add_f32 v%d, 0x%08x, v%d" % (t + 3, EPS, t + 3))
        self.round_bf16(t + 3, t + 3)
        a("v_sqrt_f32 v%d, v%d" % (t + 3, t + 3)); a("s_nop 0")
        self.round_bf16(t + 3, t + 3)
        a("v_rcp_f32 v%d, v%d" % (t + 5, t + 3))
        for src, dst in own:
            a("v_lshlrev_b32 v%d, 16, v%d" % (t + 4, src))
            a("v_sub_f32 v%d, v%d, v%d" % (t + 4, t + 4, t + 2))
            self.round_bf16(t + 4, t + 4)
            a("v_mul_f32 v%d, v%d, v%d" % (t + 6, t + 4, t + 5))
            a("v_fma_f32 v%d, -v%d, v%d, v%d" % (t + 7, t + 6, t + 3, t + 4))
            a("v_fma_f32 v%d, v%d, v%d, v%d" % (dst, t + 7, t + 5, t + 6))

    def arrive(self, c):
        a = self.a
        self.lgkm0()
        a("v_mov_b32 v%d, %d" % (vT + 14, L_CNT + 4 * c)); a("v_mov_b32 v%d, 1" % (vT + 15))
        a("s_mov_b64 exec, 1")
        a("ds_add_u32 v%d, v%d" % (vT + 14, vT + 15))
        self.exec_all()
    def await_cnt(self, c, target):
        a = self.a
        lp = a.newlabel("Lcw"); ok = a.newlabel("Lcok")
        a("v_mov_b32 v%d, %d" % (vT + 14, L_CNT + 4 * c))
        a.label(lp)
        a("ds_read_b32 v%d, v%d" % (vT + 15, vT + 14))
        self.lgkm0()
        a("v_readfirstlane_b32 s%d, v%d" % (sT0, vT + 15))
        a("s_add_u32 s%d, s%d, 1" % (sSPIN, sSPIN))
        a("s_cmp_ge_u32 s%d, %d" % (sT0, target))
        a("s_cbranch_scc1 %s" % ok)
        a("s_cmp_gt_u32 s%d, 4000000" % sSPIN)
        a("s_cbranch_scc1 %s" % ok)
        a("s_sleep 1")
        a("s_branch %s" % lp)
        a.label(ok)

    def phaseq(self, hlast, A, PQ, PD):
        a = self.a; t = vT
        self.wait(hlast)
        self.stamp(3)
        for g in range(4):
            for tt in range(3):
                c = "0" if g == 0 else "v[%d:%d]" % (PD + 4 * tt, PD + 4 * tt + 3)
                B = PQ + 12 * g + 4 * tt
                a("v_mfma_f32_16x16x32_bf16 v[%d:%d], v[%d:%d], v[%d:%d], %s" % (PD + 4 * tt, PD + 4 * tt + 3, A[g], A[g] + 3, B, B + 3, c))
        self.tile_addr(t, 768, L_STG, sw=sWW)
        a("v_and_b32 v%d, 3, v%d" % (t + 2, vL)); a("v_mul_u32_u24 v%d, 1536, v%d" % (t + 2, t + 2))
        a("v_lshrrev_b32 v%d, 2, v%d" % (t + 6, vL)); a("v_min_u32 v%d, 11, v%d" % (t + 6, t + 6))
        a("s_mul_i32 s%d, s%d, 12" % (sT1, sWW)); a("v_add_u32 v%d, s%d, v%d" % (t + 6, sT1, t + 6))
        a("v_lshl_add_u32 v%d, v%d, 4, v%d" % (t + 3, t + 6, t + 2))
        a("s_mul_i32 s%d, s%d, %d" % (sT1, sN, QP_STRIDE))
        a("v_lshl_add_u32 v%d, v%d, 4, s%d" % (t + 5, t + 6, sT1))
        self.exec_valid()
        for tt in range(3): a("ds_write_b128 v%d, v[%d:%d] offset:%d" % (t, PD + 4 * tt, PD + 4 * tt + 3, 256 * tt))
        self.exec_all()
        self.arrive(0)
        self.epoch_finish()
        self.await_cnt(0, 4)
        self.stamp(4)
        R = PD
        a("ds_read_b128 v[%d:%d], v%d offset:%d" % (R, R + 3, t + 3, L_STG))
        a("ds_read_b128 v[%d:%d], v%d offset:%d" % (R + 4, R + 7, t + 3, L_STG + 768))
        self.lgkm0()
        self.pk_add(R, R, R + 4); self.pk_add(R + 2, R + 2, R + 6)
        a("s_nop 1")
        for m in ("quad_perm:[1,0,3,2]", "quad_perm:[2,3,0,1]"):
            for r in (R, R + 1, R + 2, R + 3): a("v_add_f32_dpp v%d, v%d, v%d %s%s" % (r, r, r, m, DPP_ALL))
        self.tagit([R, R + 1, R + 2, R + 3])
        self.exec_set(0x11111111, 0x00001111)
        self.vm("global_store_dwordx4 v%d, v[%d:%d], s[%d:%d] sc1" % (t + 5, R, R + 3, sWS, sWS + 1))
        self.exec_all()
        self.stamp(5)

    GQ = vVD
    GU = vVD + 8
    GA = vVD + 32
    def q_addrs(self, normal):
        a = self.a; t = vT; GA = self.GA
        a("s_mul_i32 s%d, s%d, %d" % (sT0, sH, 5 * QP_STRIDE)); a("s_mul_i32 s%d, s%d, 192" % (sT1, sWW))
        a("s_add_u32 s%d, s%d, s%d" % (sT0, sT0, sT1))
        a("v_min_u32 v%d, 4, v%d" % (t + 1, vL7))
        a("v_mul_u32_u24 v%d, %d, v%d" % (t + 1, QP_STRIDE, t + 1))
        a("v_lshl_add_u32 v%d, v%d, 4, v%d" % (t + 2, vL8, t + 1))
        a("v_add_u32 v%d, s%d, v%d" % (GA, sT0, t + 2))
        if normal:
            a("s_mul_i32 s%d, s%d, 171" % (sT0, sCG)); a("s_lshr_b32 s%d, s%d, 9" % (sT0, sT0))
            a("s_mul_i32 s%d, s%d, 3" % (sT1, sT0)); a("s_sub_u32 s%d, s%d, s%d" % (sT1, sCG, sT1))
            a("s_add_u32 s%d, s%d, 32" % (sT0, sT0)); a("s_mul_i32 s%d, s%d, %d" % (sT0, sT0, 5 * QP_STRIDE))
            a("s_lshl_b32 s%d, s%d, 8" % (sT1, sT1)); a("s_add_u32 s%d, s%d, s%d" % (sT0, sT0, sT1))
            a("s_lshl_b32 s%d, s%d, 6" % (sT1, sWW)); a("s_add_u32 s%d, s%d, s%d" % (sT0, sT0, sT1))
            a("v_lshrrev_b32 v%d, 2, v%d" % (t + 2, vL8))
            a("v_lshl_add_u32 v%d, v%d, 4, v%d" % (t + 2, t + 2, t + 1))
            a("v_add_u32 v%d, s%d, v%d" % (GA + 1, sT0, t + 2))
            a("v_add_u32 v%d, %d, v%d" % (GA + 2, 40 * QP_STRIDE, GA + 1))
    def q_loads(self, normal):
        a = self.a; GQ, GU, GA = self.GQ, self.GU, self.GA
        for k in range(8): a("v_mov_b32 v%d, s%d" % (GQ + k, sTAG))
        if normal:
            for k in range(16): a("v_mov_b32 v%d, s%d" % (GU + k, sTAG))
        self.exec_set(0x1f1f1f1f, 0x1f1f1f1f)
        a("global_load_dwordx4 v[%d:%d], v%d, s[%d:%d] sc1" % (GQ, GQ + 3, GA, sWS, sWS + 1))
        if normal:
            a("global_load_dwordx4 v[%d:%d], v%d, s[%d:%d] sc1" % (GU, GU + 3, GA + 1, sWS, sWS + 1))
            a("global_load_dwordx4 v[%d:%d], v%d, s[%d:%d] offset:32 sc1" % (GU + 4, GU + 7, GA + 1, sWS, sWS + 1))
            a("global_load_dwordx4 v[%d:%d], v%d, s[%d:%d] sc1" % (GU + 8, GU + 11, GA + 2, sWS, sWS + 1))
            a("global_load_dwordx4 v[%d:%d], v%d, s[%d:%d] offset:32 sc1" % (GU + 12, GU + 15, GA + 2, sWS, sWS + 1))
        a("s_mov_b32 exec_hi, 0")
        a("global_load_dwordx4 v[%d:%d], v%d, s[%d:%d] offset:128 sc1" % (GQ + 4, GQ + 7, GA, sWS, sWS + 1))
        self.exec_all()
    def q_check(self, normal):
        g = [self.GQ, self.GQ + 4]
        if normal: g += [self.GU, self.GU + 4, self.GU + 8, self.GU + 12]
        self.check_tags(g, vT)
    def q_reduce(self, normal, WD, DF):
        a = self.a; t = vT; GQ, GU = self.GQ, self.GU
        regs = [GQ + k for k in range(8)]
        self.untag(regs)
        self.reduce8(regs)
        for i in range(2):
            a("v_cvt_pk_bf16_f32 v%d, v%d, v%d" % (t + 2 * i, GQ + 4 * i, GQ + 4 * i + 1))
            a("v_cvt_pk_bf16_f32 v%d, v%d, v%d" % (t + 2 * i + 1, GQ + 4 * i + 2, GQ + 4 * i + 3))
        a("s_mul_i32 s%d, s%d, 96" % (sT0, sWW)); a("s_add_u32 s%d, s%d, %d" % (sT0, sT0, L_Q))
        a("v_lshl_add_u32 v%d, v%d, 3, s%d" % (t + 6, vL8, sT0))
        self.exec_set(0x01010101, 0x01010101)
        a("ds_write_b64 v%d, v[%d:%d]" % (t + 6, t, t + 1))
        a("s_mov_b32 exec_hi, 0")
        a("ds_write_b64 v%d, v[%d:%d] offset:64" % (t + 6, t + 2, t + 3))
        self.exec_all()
        self.arrive(1)
        self.stamp(7)
        if normal:
            a("v_and_b32 v%d, 3, v%d" % (t, vL8))
            for k in (1, 2, 3): a("v_cmp_eq_u32 s[%d:%d], %d, v%d" % (sM0 + 2 * k, sM0 + 2 * k + 1, k, t))
            a("s_nop 0")
            for q in range(4):
                for k in (1, 2, 3):
                    a("v_cndmask_b32 v%d, v%d, v%d, s[%d:%d]" % (GU + 4 * q, GU + 4 * q, GU + 4 * q + k, sM0 + 2 * k, sM0 + 2 * k + 1))
            sel = [GU, GU + 4, GU + 8, GU + 12]
            self.untag(sel)
            self.reduce8(sel)
            for g, u in ((GU, GU + 8), (GU + 4, GU + 12)):
                self.round_bf16(g, g); self.round_bf16(u, u)
                self.silu(g, g, t + 3)
                self.round_bf16(g, g)
                a("v_mul_f32 v%d, v%d, v%d" % (g, g, u))
            A0, A1 = t + 4, t + 8
            self.build_A(A0, GU); self.build_A(A1, GU + 4)
            a("s_nop 1")
            a("v_mfma_f32_16x16x32_bf16 v[%d:%d], v[%d:%d], v[%d:%d], 0" % (DF, DF + 3, A0, A0 + 3, WD, WD + 3))
            a("v_mfma_f32_16x16x32_bf16 v[%d:%d], v[%d:%d], v[%d:%d], v[%d:%d]" % (DF, DF + 3, A1, A1 + 3, WD + 4, WD + 7, DF, DF + 3))
            self.tile_addr(t + 12, 256, L_F, sw=sWW)
            a("s_nop 4")
            self.exec_valid()
            a("ds_write_b128 v%d, v[%d:%d]" % (t + 12, DF, DF + 3))
            self.exec_all()
            self.arrive(2)
    def f_publish(self):
        a = self.a; t = vT; R = vX
        self.await_cnt(2, 4)
        a("v_and_b32 v%d, 3, v%d" % (t, vL)); a("v_lshlrev_b32 v%d, 9, v%d" % (t, t))
        a("v_lshrrev_b32 v%d, 2, v%d" % (t + 1, vL))
        a("v_lshl_add_u32 v%d, v%d, 4, v%d" % (t, t + 1, t))
        a("ds_read_b128 v[%d:%d], v%d offset:%d" % (R, R + 3, t, L_F))
        a("ds_read_b128 v[%d:%d], v%d offset:%d" % (R + 4, R + 7, t, L_F + 256))
        a("s_mul_i32 s%d, s%d, %d" % (sT3, sN, OUT2_STRIDE)); a("s_add_u32 s%d, s%d, 384" % (sT3, sT3))
        a("v_lshlrev_b32 v%d, 4, v%d" % (t + 1, t + 1)); a("v_add_u32 v%d, s%d, v%d" % (t + 1, sT3, t + 1))
        self.lgkm0()
        self.pk_add(R, R, R + 4); self.pk_add(R + 2, R + 2, R + 6)
        a("s_nop 1")
        for m in ("quad_perm:[1,0,3,2]", "quad_perm:[2,3,0,1]"):
            for k in range(4): a("v_add_f32_dpp v%d, v%d, v%d %s%s" % (R + k, R + k, R + k, m, DPP_ALL))
        self.tagit([R, R + 1, R + 2, R + 3])
        self.exec_set(0x11111111, 0x11111111)
        self.vm("global_store_dwordx4 v%d, v[%d:%d], s[%d:%d] sc1" % (t + 1, R, R + 3, sOUT2, sOUT2 + 1), "w4")
        self.exec_all()
    def read_qf(self):
        a = self.a
        a("v_lshlrev_b32 v%d, 4, v%d" % (vT, vL7))
        for t in range(3): a("ds_read_b128 v[%d:%d], v%d offset:%d" % (vQF + 4 * t, vQF + 4 * t + 3, vT, L_Q + 128 * t))
        self.lgkm0()
    def qk_groups(self, groups):
        a = self.a
        for t in range(3):
            for v in range(4):
                for g in groups:
                    k = vKD + 12 * g + 4 * t + v
                    src2 = "0" if (t == 0 and v == 0) else "v%d" % (vSC + g)
                    a("v_dot2_f32_bf16 v%d, v%d, v%d, %s" % (vSC + g, k, vQF + 4 * t + v, src2))
    def softmax(self):
        a = self.a; t = vT
        a("s_nop 2")
        self.reduce8([vSC + g for g in range(8)])
        a("s_mov_b32 s%d, 0x%08x" % (sT0, SCALE))
        for g in range(0, 8, 2):
            a("v_cvt_pk_bf16_f32 v%d, v%d, v%d" % (t, vSC + g, vSC + g + 1))
            a("v_lshlrev_b32 v%d, 16, v%d" % (vSC + g, t))
            a("v_and_b32 v%d, 0xffff0000, v%d" % (vSC + g + 1, t))
            a("v_mul_f32 v%d, s%d, v%d" % (vSC + g, sT0, vSC + g))
            a("v_mul_f32 v%d, s%d, v%d" % (vSC + g + 1, sT0, vSC + g + 1))
            a("v_cvt_pk_bf16_f32 v%d, v%d, v%d" % (t, vSC + g, vSC + g + 1))
            a("v_lshlrev_b32 v%d, 16, v%d" % (vSC + g, t))
            a("v_and_b32 v%d, 0xffff0000, v%d" % (vSC + g + 1, t))
        a("v_max3_f32 v%d, v%d, v%d, v%d" % (t, vSC, vSC + 1, vSC + 2))
        a("v_max3_f32 v%d, v%d, v%d, v%d" % (t + 1, vSC + 3, vSC + 4, vSC + 5))
        a("v_max3_f32 v%d, v%d, v%d, v%d" % (t, t, vSC + 6, vSC + 7))
        a("v_max_f32 v%d, v%d, v%d" % (t, t, t + 1))
        self.slots_reduce_sgpr(t, "v_max_f32", sMW)
        a("s_mov_b32 s%d, 0x%08x" % (sT0, LOG2E))
        for g in range(8):
            a("v_subrev_f32 v%d, s%d, v%d" % (vSC + g, sMW, vSC + g))
            a("v_mul_f32 v%d, s%d, v%d" % (vSC + g, sT0, vSC + g))
            a("v_exp_f32 v%d, v%d" % (vSC + g, vSC + g))
        a("s_nop 0")
        a("v_add_f32 v%d, v%d, v%d" % (t, vSC, vSC + 1)); a("v_add_f32 v%d, v%d, v%d" % (t + 1, vSC + 2, vSC + 3))
        a("v_add_f32 v%d, v%d, v%d" % (t + 2, vSC + 4, vSC + 5)); a("v_add_f32 v%d, v%d, v%d" % (t + 3, vSC + 6, vSC + 7))
        a("v_add_f32 v%d, v%d, v%d" % (t, t, t + 1)); a("v_add_f32 v%d, v%d, v%d" % (t + 2, t + 2, t + 3))
        a("v_add_f32 v%d, v%d, v%d" % (t, t, t + 2))
        self.slots_reduce_sgpr(t, "v_add_f32", sLW)
        a("s_lshl_b32 s%d, s%d, 3" % (sT0, sW)); a("s_add_u32 s%d, s%d, %d" % (sT0, sT0, L_ML))
        a("v_mov_b32 v%d, s%d" % (t, sT0))
        a("v_mov_b32 v%d, s%d" % (t + 2, sMW)); a("v_mov_b32 v%d, s%d" % (t + 3, sLW))
        a("s_mov_b64 exec, 1")
        a("ds_write_b64 v%d, v[%d:%d]" % (t, t + 2, t + 3))
        self.exec_all()
        self.arrive(3)
    def build_PA(self):
        for g in range(8): self.build_A(vKD + 4 * g, vSC + g)
    def pv_group(self, g):
        DA = vKD + 32
        for t in range(3):
            B = vVD + 12 * g + 4 * t
            c = "0" if g == 0 else "v[%d:%d]" % (DA + 4 * t, DA + 4 * t + 3)
            self.a("v_mfma_f32_16x16x32_bf16 v[%d:%d], v[%d:%d], v[%d:%d], %s" % (DA + 4 * t, DA + 4 * t + 3, vKD + 4 * g, vKD + 4 * g + 3, B, B + 3, c))
    def wg_factor(self):
        a = self.a; t = vT
        self.await_cnt(3, 8)
        a("v_lshlrev_b32 v%d, 3, v%d" % (t, vL7))
        a("ds_read_b64 v[%d:%d], v%d offset:%d" % (t + 2, t + 3, t, L_ML))
        self.lgkm0()
        a("v_mov_b32 v%d, v%d" % (t + 4, t + 2))
        a("s_nop 1")
        self.reduce8([t + 4], "v_max_f32")
        a("s_mov_b32 s%d, 0x%08x" % (sT0, LOG2E))
        a("v_sub_f32 v%d, s%d, v%d" % (vFAC, sMW, t + 4))
        a("v_mul_f32 v%d, s%d, v%d" % (vFAC, sT0, vFAC))
        a("v_exp_f32 v%d, v%d" % (vFAC, vFAC))
        lab = a.newlabel("Lskip_ml")
        a("s_cmp_eq_u32 s%d, 0" % sW); a("s_cbranch_scc0 %s" % lab)
        a("v_sub_f32 v%d, v%d, v%d" % (t + 5, t + 2, t + 4))
        a("v_mul_f32 v%d, s%d, v%d" % (t + 5, sT0, t + 5))
        a("v_exp_f32 v%d, v%d" % (t + 5, t + 5)); a("s_nop 0")
        a("v_mul_f32 v%d, v%d, v%d" % (t + 5, t + 5, t + 3))
        a("s_nop 1")
        self.reduce8([t + 5])
        a("v_mov_b32 v%d, v%d\nv_mov_b32 v%d, v%d" % (t + 6, t + 4, t + 7, t + 5))
        self.tagit([t + 4, t + 5, t + 6, t + 7])
        a("s_mul_i32 s%d, s2, %d" % (sT1, OUT2_STRIDE)); a("v_mov_b32 v%d, s%d" % (t, sT1))
        a("s_mov_b64 exec, 1")
        self.vm("global_store_dwordx4 v%d, v[%d:%d], s[%d:%d] sc1" % (t, t + 4, t + 7, sOUT2, sOUT2 + 1), "w0")
        self.exec_all()
        a.label(lab)
    def pv_stage(self, scale=True):
        a = self.a; t = vT; DA = vKD + 32
        self.tile_addr(t, 768, L_STG)
        a("s_nop 3")
        if scale:
            for k in range(12): a("v_mul_f32 v%d, v%d, v%d" % (DA + k, vFAC, DA + k))
        self.exec_valid()
        for tt in range(3): a("ds_write_b128 v%d, v[%d:%d] offset:%d" % (t, DA + 4 * tt, DA + 4 * tt + 3, 256 * tt))
        self.exec_all()
    def wo_loads(self):
        a = self.a; WO = vKD + 48
        a("v_mul_u32_u24 v%d, 5120, v%d" % (vX + 13, vL8))
        a("v_lshl_add_u32 v%d, v%d, 4, v%d" % (vX + 13, vL7, vX + 13))
        for r in range(4):
            self.vm("global_load_dwordx4 v[%d:%d], v%d, s[%d:%d] offset:%d %s" % (WO + 4 * r, WO + 4 * r + 3, vX + 13, sWO, sWO + 1, 1280 * r, self.nt))
    def wo_base(self):
        a = self.a
        a("s_lshl_b32 s%d, s%d, 3" % (sT1, sCG)); a("s_add_u32 s%d, s%d, s%d" % (sT1, sT1, sW))
        a("s_lshl_b32 s%d, s%d, 7" % (sT3, sRB))
        a("s_mul_i32 s%d, s%d, %d" % (sT2, sT1, 32 * 1280)); a("s_add_u32 s%d, s%d, s%d" % (sT2, sT2, sT3))
        a("s_add_u32 s%d, s%d, s%d" % (sWO, sWO, sT2)); a("s_addc_u32 s%d, s%d, 0" % (sWO + 1, sWO + 1))

    def tail_publish_o(self):
        a = self.a; t = vT
        a("s_lshl_b32 s%d, s%d, 7" % (sT0, sW))
        a("v_lshl_add_u32 v%d, v%d, 4, s%d" % (t + 1, vL8, sT0))
        a("v_mul_u32_u24 v%d, 1536, v%d" % (t + 2, vL7))
        a("v_add_u32 v%d, v%d, v%d" % (t + 2, t + 1, t + 2))
        a("s_lshl_b32 s%d, s%d, 3" % (sT0, sH)); a("s_add_u32 s%d, s%d, s%d" % (sT0, sT0, sJ))
        a("s_mul_i32 s%d, s%d, 768" % (sT0, sT0))
        a("v_add_u32 v%d, s%d, v%d" % (t + 3, sT0, t + 1))
        self.lgkm0()
        self.xstamp(8)
        a("s_barrier")
        self.stamp(10)
        lab = a.newlabel("Lskip_o")
        a("s_cmp_lt_u32 s%d, 6" % sW); a("s_cbranch_scc0 %s" % lab)
        R = vX
        a("ds_read_b128 v[%d:%d], v%d offset:%d" % (R, R + 3, t + 2, L_STG))
        a("ds_read_b128 v[%d:%d], v%d offset:%d" % (R + 4, R + 7, t + 2, L_STG + 768))
        self.lgkm0()
        self.pk_add(R, R, R + 4); self.pk_add(R + 2, R + 2, R + 6)
        a("s_nop 1")
        self.reduce8([R, R + 1, R + 2, R + 3])
        self.tagit([R, R + 1, R + 2, R + 3])
        self.exec_set(0x01010101, 0x01010101)
        a("global_store_dwordx4 v%d, v[%d:%d], s[%d:%d] sc1" % (t + 3, R, R + 3, sO, sO + 1))
        self.exec_all()
        a.label(lab)
    H_RL = vKD + 64
    H_M = vKD + 72
    H_AM = vKD + 68
    H_AO = vKD + 69
    def hop1_addrs(self):
        a = self.a; t = vT
        a("s_lshl_b32 s%d, s%d, 3" % (sT0, sCG)); a("s_add_u32 s%d, s%d, s%d" % (sT0, sT0, sW))
        a("s_mul_i32 s%d, s%d, 171" % (sT1, sT0)); a("s_lshr_b32 s%d, s%d, 10" % (sT1, sT1))
        a("s_mul_i32 s%d, s%d, 6" % (sT2, sT1)); a("s_sub_u32 s%d, s%d, s%d" % (sT2, sT0, sT2))
        if self.mapping == "lin":
            a("s_lshl_b32 s%d, s%d, 3" % (sT3, sT1)); a("v_add_u32 v%d, s%d, v%d" % (self.H_AM, sT3, vL7))
        else:
            a("s_lshr_b32 s%d, s%d, 2" % (sT3, sT1)); a("s_and_b32 s%d, s%d, 3" % (sT0, sT1))
            a("s_lshl_b32 s%d, s%d, 3" % (sT0, sT0)); a("s_add_u32 s%d, s%d, s%d" % (sT3, sT3, sT0))
            a("v_lshl_add_u32 v%d, v%d, 5, s%d" % (self.H_AM, vL7, sT3))
        a("v_mul_u32_u24 v%d, %d, v%d" % (self.H_AM, OUT2_STRIDE, self.H_AM))
        a("s_mul_i32 s%d, s%d, 6144" % (sT1, sT1)); a("s_lshl_b32 s%d, s%d, 7" % (sT2, sT2))
        a("s_add_u32 s%d, s%d, s%d" % (sT1, sT1, sT2))
        a("v_mul_u32_u24 v%d, 768, v%d" % (self.H_AO, vL7))
        a("v_lshl_add_u32 v%d, v%d, 4, v%d" % (self.H_AO, vL8, self.H_AO))
        a("v_add_u32 v%d, s%d, v%d" % (self.H_AO, sT1, self.H_AO))
    def hop1_ldm(self): return "global_load_dwordx4 v[%d:%d], v%d, s[%d:%d] sc1" % (self.H_M, self.H_M + 3, self.H_AM, sOUT2, sOUT2 + 1)
    def hop1_ld(self): return "global_load_dwordx4 v[%d:%d], v%d, s[%d:%d] sc1" % (self.H_RL, self.H_RL + 3, self.H_AO, sO, sO + 1)
    def hop1_first(self, track):
        self.hop1_addrs()
        if track: self.vm(self.hop1_ldm()); self.vm(self.hop1_ld())
        else: self.a(self.hop1_ldm()); self.a(self.hop1_ld())
    def hop1_wo(self):
        a = self.a; t = vT; RL = self.H_RL; R = vX + 4; M = self.H_M
        early = self.o.get("early", 0)
        if not early: self.hop1_first(False)
        ldm = self.hop1_ldm(); ld = self.hop1_ld()
        self.tile_addr(t + 9, 256, L_S)
        if early:
            lb = a.newlabel("Lw67")
            a("s_cmp_lt_u32 s%d, 6" % sW); a("s_cbranch_scc1 %s" % lb)
            a("s_waitcnt vmcnt(0)")
            a.label(lb)
        a("s_waitcnt vmcnt(1)")
        self.xstamp(3)
        def mlre(): a(ldm)
        self.poll_retry("ml", lambda: self.check_tags([M], t), mlre, sleep=self.o.get("osleep", 1), masked=bool(self.o.get("masked", 1)))
        self.xstamp(4)
        self.untag([M, M + 1])
        a("v_mov_b32 v%d, v%d" % (t, M)); a("s_nop 1")
        self.reduce8([t], "v_max_f32")
        a("s_mov_b32 s%d, 0x%08x" % (sT0, LOG2E))
        a("v_sub_f32 v%d, v%d, v%d" % (t, M, t)); a("v_mul_f32 v%d, s%d, v%d" % (t, sT0, t))
        a("v_exp_f32 v%d, v%d" % (t, t)); a("s_nop 0")
        a("v_mul_f32 v%d, v%d, v%d" % (t + 1, t, M + 1)); a("s_nop 1")
        self.reduce8([t + 1])
        a("v_rcp_f32 v%d, v%d" % (t + 1, t + 1)); a("s_nop 0")
        a("v_mul_f32 v%d, v%d, v%d" % (t + 2, t, t + 1))
        if not early: a("s_waitcnt vmcnt(0)")
        self.xstamp(5)
        if self.o.get("tdiag", 0): a("s_mov_b32 s%d, 0" % sSPIN)
        if self.o.get("pipe", 1):
            self.poll_pipe("o", lambda: self.check_tags([RL], t), lambda: a(ld), half_rtt=self.o.get("half", 8))
        else:
            self.poll_retry("o", lambda: self.check_tags([RL], t), lambda: a(ld), sleep=self.o.get("osleep", 1), masked=bool(self.o.get("masked", 1)))
        if self.o.get("tdiag", 0):
            a("s_waitcnt lgkmcnt(0)")
            a("s_mul_i32 s%d, s%d, 100" % (sT0, sSPIN))
            a("s_add_u32 s%d, s%d, s%d" % (sSTAMP + 12, sSTAMP, sT0)); a("s_addc_u32 s%d, s%d, 0" % (sSTAMP + 13, sSTAMP + 1))
        self.tstamp(11)
        for k in range(4): a("v_and_b32 v%d, 0xffffff00, v%d" % (R + k, RL + k))
        for k in range(4): a("v_mul_f32 v%d, v%d, v%d" % (R + k, t + 2, R + k))
        self.reduce8([R, R + 1, R + 2, R + 3])
        A = vKD
        for r in range(4): self.build_A(A + 4 * r, R + r)
        WO = vKD + 48; DS = vKD + 44
        a("s_nop 1")
        for r in range(4):
            c = "0" if r == 0 else "v[%d:%d]" % (DS, DS + 3)
            a("v_mfma_f32_16x16x32_bf16 v[%d:%d], v[%d:%d], v[%d:%d], %s" % (DS, DS + 3, A + 4 * r, A + 4 * r + 3, WO + 4 * r, WO + 4 * r + 3, c))
        a("s_nop 7")
        self.exec_valid()
        a("ds_write_b128 v%d, v[%d:%d]" % (t + 9, DS, DS + 3))
        self.exec_all()
        self.lgkm0()
        self.xstamp(7)
        a("s_barrier")
        lab = a.newlabel("Lskip_s")
        a("s_cmp_eq_u32 s%d, 0" % sW); a("s_cbranch_scc0 %s" % lab)
        a("s_mul_i32 s%d, s%d, %d" % (sT3, sN, OUT2_STRIDE)); a("s_add_u32 s%d, s%d, 128" % (sT3, sT3))
        self.reduce16_publish(L_S, sT3, vX)
        self.tstamp(12)
        a.label(lab)
    def reduce16_publish(self, lbase, goff, R):
        a = self.a; t = vT
        a("v_and_b32 v%d, 3, v%d" % (t, vL)); a("v_lshlrev_b32 v%d, 10, v%d" % (t, t))
        a("v_lshrrev_b32 v%d, 2, v%d" % (t + 1, vL))
        a("v_lshl_add_u32 v%d, v%d, 4, v%d" % (t, t + 1, t))
        for k in range(4): a("ds_read_b128 v[%d:%d], v%d offset:%d" % (R + 4 * k, R + 4 * k + 3, t, lbase + 256 * k))
        a("v_lshlrev_b32 v%d, 4, v%d" % (t + 1, t + 1)); a("v_add_u32 v%d, s%d, v%d" % (t + 1, goff, t + 1))
        self.lgkm0()
        for k in (0, 2):
            self.pk_add(R + k, R + k, R + 4 + k); self.pk_add(R + 8 + k, R + 8 + k, R + 12 + k)
        for k in (0, 2): self.pk_add(R + k, R + k, R + 8 + k)
        a("s_nop 0")
        for m in ("quad_perm:[1,0,3,2]", "quad_perm:[2,3,0,1]"):
            for k in range(4): a("v_add_f32_dpp v%d, v%d, v%d %s%s" % (R + k, R + k, R + k, m, DPP_ALL))
        self.tagit([R, R + 1, R + 2, R + 3])
        self.exec_set(0x11111111, 0x11111111)
        a("global_store_dwordx4 v%d, v[%d:%d], s[%d:%d] sc1" % (t + 1, R, R + 3, sOUT2, sOUT2 + 1))
        self.exec_all()
    def final(self):
        a = self.a; t = vT
        lab = a.newlabel("Lskip_fin")
        a("s_cmp_lt_u32 s%d, 4" % sW); a("s_cbranch_scc0 %s" % lab)
        a("s_cmp_lt_u32 s%d, 250" % sN); a("s_cbranch_scc0 %s" % lab)
        a("s_sub_u32 s%d, s%d, 240" % (sT3, sN))
        AD = vKD
        a("v_lshrrev_b32 v%d, 2, v%d" % (t, vL))
        a("v_mul_u32_u24 v%d, %d, v%d" % (t, 10 * OUT2_STRIDE, t))
        a("v_and_b32 v%d, 3, v%d" % (t + 1, vL))
        a("v_lshl_add_u32 v%d, v%d, 4, v%d" % (t, t + 1, t))
        a("s_mul_i32 s%d, s%d, %d" % (sT0, sT3, OUT2_STRIDE)); a("s_lshl_b32 s%d, s%d, 6" % (sT1, sW))
        a("s_add_u32 s%d, s%d, s%d" % (sT0, sT0, sT1))
        a("v_add_u32 v%d, s%d, v%d" % (AD, sT0, t))
        a("v_add_u32 v%d, %d, v%d" % (AD + 1, 160 * OUT2_STRIDE, AD))
        RF = vKD + 8; RS = vKD + 16; RC = vKD + 24; XR = vKD + 32
        a("s_lshl_b32 s%d, s%d, 7" % (sT0, sT3)); a("s_lshl_b32 s%d, s%d, 5" % (sT1, sW)); a("s_add_u32 s%d, s%d, s%d" % (sT0, sT0, sT1))
        a("v_lshl_add_u32 v%d, v%d, 3, s%d" % (t + 2, t + 1, sT0))
        a("global_load_dwordx2 v[%d:%d], v%d, s[%d:%d]" % (XR, XR + 1, t + 2, sX, sX + 1))
        def prefill(R):
            for k in range(4, 8): a("v_mov_b32 v%d, s%d" % (R + k, sTAG))
        def loads(R, off, masked=False):
            a("global_load_dwordx4 v[%d:%d], v%d, s[%d:%d] offset:%d sc1" % (R, R + 3, AD, sOUT2, sOUT2 + 1, off))
            a("s_mov_b32 exec_hi, 0")
            a("global_load_dwordx4 v[%d:%d], v%d, s[%d:%d] offset:%d sc1" % (R + 4, R + 7, AD + 1, sOUT2, sOUT2 + 1, off))
            if not masked: self.exec_all()
        def check(R): self.check_tags([R, R + 4], t + 3)
        def total(R, src):
            for k in range(8): a("v_and_b32 v%d, 0xffffff00, v%d" % (R + k, src + k))
            self.pk_add(R, R, R + 4); self.pk_add(R + 2, R + 2, R + 6)
            a("s_nop 0")
            for m in ("row_ror:4", "row_ror:8"):
                for k in range(4): a("v_add_f32_dpp v%d, v%d, v%d %s%s" % (R + k, R + k, R + k, m, DPP_ALL))
            for sw in ("v_permlane16_swap_b32", "v_permlane32_swap_b32"):
                for k in range(4): a("v_mov_b32 v%d, v%d" % (R + 4 + k, R + k))
                a("s_nop 0")
                for k in range(4): a("%s v%d, v%d" % (sw, R + k, R + 4 + k))
                for k in range(4): a("v_add_f32 v%d, v%d, v%d" % (R + k, R + k, R + 4 + k))
        prefill(RF); prefill(RS)
        loads(RF, 384)
        a("s_waitcnt vmcnt(0)")
        self.poll_retry("f", lambda: check(RF), lambda: loads(RF, 384))
        loads(RS, 128)
        total(RF, RF)
        for k in range(4):
            self.round_bf16(RF + k, RF + k); self.silu(RF + k, RF + k, t + 5); self.round_bf16(RF + k, RF + k)
        a("v_lshlrev_b32 v%d, 16, v%d" % (t + 6, XR)); a("v_and_b32 v%d, 0xffff0000, v%d" % (t + 7, XR))
        a("v_lshlrev_b32 v%d, 16, v%d" % (t + 8, XR + 1)); a("v_and_b32 v%d, 0xffff0000, v%d" % (t + 9, XR + 1))
        a("s_waitcnt vmcnt(0)")
        self.poll_pipe("s", lambda: check(RS), lambda: loads(RS, 128, True), half_rtt=self.o.get("half", 8), nload=2)
        self.tstamp(13)
        total(RC, RS)
        for k in range(4):
            self.round_bf16(RC + k, RC + k)
            a("v_mul_f32 v%d, v%d, v%d" % (RC + k, RC + k, RF + k))
            self.round_bf16(RC + k, RC + k)
            a("v_add_f32 v%d, v%d, v%d" % (RC + k, RC + k, t + 6 + k))
        a("v_cvt_pk_bf16_f32 v%d, v%d, v%d" % (t + 10, RC, RC + 1))
        a("v_cvt_pk_bf16_f32 v%d, v%d, v%d" % (t + 11, RC + 2, RC + 3))
        a("s_mov_b64 exec, 0xf")
        a("global_store_dwordx2 v%d, v[%d:%d], s[%d:%d]" % (t + 2, t + 10, t + 11, sOUT, sOUT + 1))
        if self.o.get("dbgtime", 0):
            a("s_memrealtime s[98:99]")
            a("s_waitcnt lgkmcnt(0)")
            a("s_sub_u32 s98, s98, s96")
            a("s_sub_u32 s99, s%d, 240" % sN); a("s_lshl_b32 s99, s99, 2")
            a("s_mov_b64 exec, 1")
            a("v_mov_b32 v%d, s99" % (t + 12)); a("v_mov_b32 v%d, s98" % (t + 13))
            a("global_store_dword v%d, v%d, s[%d:%d]" % (t + 12, t + 13, sDBG, sDBG + 1))
        lab2 = a.newlabel("Lskip_ep")
        a("s_cmp_eq_u32 s%d, 240" % sN); a("s_cbranch_scc0 %s" % lab2)
        a("s_cmp_eq_u32 s%d, 0" % sW); a("s_cbranch_scc0 %s" % lab2)
        a("s_mov_b64 exec, 1")
        a("v_mov_b32 v%d, 0x%x" % (t + 12, WS_EPOCH)); a("v_mov_b32 v%d, s%d" % (t + 13, sE))
        a("global_store_dword v%d, v%d, s[%d:%d]" % (t + 12, t + 13, sWS, sWS + 1))
        a.label(lab2)
        self.exec_all()
        self.tstamp(14)
        a.label(lab)
    def probe(self):
        a = self.a; t = vT
        lab = a.newlabel("Lskip_probe")
        a("s_cmp_eq_u32 s%d, 250" % sN); a("s_cbranch_scc0 %s" % lab)
        a("s_cmp_eq_u32 s%d, 0" % sW); a("s_cbranch_scc0 %s" % lab)
        for _ in range(12): a("s_sleep 127")
        a("s_load_dwordx4 s[64:67], s[0:1], 8")
        a("s_load_dwordx2 s[68:69], s[0:1], 24")
        a("s_getreg_b32 s70, hwreg(HW_REG_XCC_ID)")
        a("s_waitcnt lgkmcnt(0)")
        a("s_mov_b64 exec, 1")
        slot = 0
        for base in (64, 66, 68):
            for page in (0, 1):
                for b13 in (0, 1):
                    off0 = page * (2 << 20) + b13 * 8192 + 0x40000
                    a("v_mov_b32 v%d, %d" % (t, off0 + 4096)); a("global_load_dword v%d, v%d, s[%d:%d] nt" % (t + 1, t, base, base + 1)); a("s_waitcnt vmcnt(0)")
                    a("s_mov_b32 s72, -1")
                    for r in range(3):
                        a("v_mov_b32 v%d, %d" % (t, off0 + 256 * (r + 1)))
                        a("s_nop 2")
                        a("s_memtime s[74:75]"); a("s_waitcnt lgkmcnt(0)")
                        a("global_load_dword v%d, v%d, s[%d:%d] nt" % (t + 1, t, base, base + 1)); a("s_waitcnt vmcnt(0)")
                        a("s_memtime s[76:77]"); a("s_waitcnt lgkmcnt(0)")
                        a("s_sub_u32 s76, s76, s74"); a("s_min_u32 s72, s72, s76")
                    a("v_mov_b32 v%d, %d" % (t, 4 * slot)); a("v_mov_b32 v%d, s72" % (t + 1))
                    a("global_store_dword v%d, v%d, s[%d:%d]" % (t, t + 1, sDBG, sDBG + 1))
                    slot += 1
        a("v_mov_b32 v%d, %d" % (t, 4 * 12)); a("v_mov_b32 v%d, s70" % (t + 1))
        a("global_store_dword v%d, v%d, s[%d:%d]" % (t, t + 1, sDBG, sDBG + 1))
        a("v_mov_b32 v%d, %d" % (t, 4 * 13)); a("v_mov_b32 v%d, s64" % (t + 1))
        a("global_store_dword v%d, v%d, s[%d:%d]" % (t, t + 1, sDBG, sDBG + 1))
        a("v_mov_b32 v%d, %d" % (t, 4 * 14)); a("v_mov_b32 v%d, s66" % (t + 1))
        a("global_store_dword v%d, v%d, s[%d:%d]" % (t, t + 1, sDBG, sDBG + 1))
        self.exec_all()
        a.label(lab)
    def write_stamps(self):
        if not self.stamps: return
        a = self.a
        lab = a.newlabel("Lskip_st")
        if not self.o.get("stamp_all", 0):
            a("s_cmp_eq_u32 s%d, %d" % (sW, self.o.get("stamp_wave", 0))); a("s_cbranch_scc0 %s" % lab)
        self.stamp(15)
        self.lgkm0()
        a("s_add_u32 s%d, s%d, 0x%x" % (sWS, sWS, STAMP_OFF)); a("s_addc_u32 s%d, s%d, 0" % (sWS + 1, sWS + 1))
        if self.o.get("stamp_all", 0):
            a("s_lshl_b32 s%d, s%d, 3" % (sT0, sN)); a("s_add_u32 s%d, s%d, s%d" % (sT0, sT0, sW)); a("s_lshl_b32 s%d, s%d, 7" % (sT0, sT0))
        else:
            a("s_lshl_b32 s%d, s%d, 7" % (sT0, sN))
        a("v_mov_b32 v%d, s%d" % (vT, sT0))
        a("s_mov_b64 exec, 1")
        for k in range(0, 16, 2):
            for q in range(4): a("v_mov_b32 v%d, s%d" % (vT + 4 + q, sSTAMP + 2 * k + q))
            a("global_store_dwordx4 v%d, v[%d:%d], s[%d:%d] offset:%d" % (vT, vT + 4, vT + 7, sWS, sWS + 1, 8 * k))
            a("s_nop 1")
        a.label(lab)
    def attention(self, hK, hV, after_issue=None):
        a = self.a
        self.await_cnt(1, 4)
        self.read_qf()
        self.wait(hK[11]); self.qk_groups([0, 1, 2, 3])
        self.wait(hK[23]); self.qk_groups([4, 5, 6, 7])
        self.softmax()
        self.stamp(8)
        self.build_PA()
        for g in range(7):
            self.wait(hV[3 * g + 2]); self.pv_group(g)

    def streamer(self, normal):
        a = self.a; o = self.o
        DS = o.get("ds", 6)
        NB = o.get("nb0", 6)
        self.ops = [None] * NB
        hs = list(range(NB))
        self.b0()
        if o.get("sdiag", 0):
            self.stamp(4)
            self.wait(hs[0]); self.stamp(5)
        self.epoch_load()
        if o.get("pf", 1): self.code_prefetch(vX)
        items = [("K", i) for i in range(NB, 24)] + [("V", i) for i in range(24)]
        for k, (m, i) in enumerate(items):
            n = len(hs)
            if DS and n - DS >= 0: self.wait(hs[n - DS])
            hs.append(self.kv_load(m, i))
            if o.get("prog", 0) and n in (14, 22, 30): self.stamp({14: 2, 22: 3, 30: 4}[n])
            if n == max(4, NB):
                self.consts()
                if o.get("pretouch", 0):
                    t = vT
                    self.lgkm0()
                    a("s_add_u32 s%d, s%d, 2" % (sT0, sE)); a("s_and_b32 s%d, s%d, 0xff" % (sT0, sT0))
                    for k in range(4): a("v_mov_b32 v%d, s%d" % (t + 4 + k, sT0))
                    a("s_lshl_b32 s%d, s%d, 3" % (sT0, sH)); a("s_add_u32 s%d, s%d, s%d" % (sT0, sT0, sJ)); a("s_mul_i32 s%d, s%d, 768" % (sT0, sT0))
                    a("v_lshl_add_u32 v%d, v%d, 4, s%d" % (t, vL, sT0))
                    a("s_mul_i32 s%d, s%d, %d" % (sT1, sN, OUT2_STRIDE))
                    a("v_lshl_add_u32 v%d, v%d, 4, s%d" % (t + 1, vL, sT1))
                    lab = a.newlabel("Lpt")
                    a("s_cmp_eq_u32 s%d, 0" % sW); a("s_cbranch_scc0 %s" % lab)
                    self.exec_set(0xffffffff, 0x0000ffff)
                    self.vm("global_store_dwordx4 v%d, v[%d:%d], s[%d:%d] sc1" % (t, t + 4, t + 7, sO, sO + 1), "pt")
                    self.exec_set(0xffffff00, 0x000000ff)
                    self.vm("global_store_dwordx4 v%d, v[%d:%d], s[%d:%d] sc1" % (t + 1, t + 4, t + 7, sOUT2, sOUT2 + 1), "pt")
                    self.exec_all()
                    a.label(lab)
        hK = hs[:24]; hV = hs[24:]
        self.stamp(1)
        if o.get("so", 0):
            if normal:
                self.wo_base(); self.wo_loads()
            a("s_waitcnt vmcnt(0)")
            self.stamp(9)
            return
        self.lgkm0()
        self.epoch_finish()
        if normal: self.wo_base()
        self.attention(hK, hV)
        self.wait(hV[23]); self.pv_group(7)
        self.stamp(9)
        self.wg_factor()
        self.pv_stage(scale=True)
        if normal and o.get("wo_mode", 1) in (1, 2):
            self.await_cnt(4, 4)
            a("s_setprio 3")
            self.wo_loads()
        if normal and o.get("early", 0): self.hop1_first(False)
        a("s_setprio 1")

    def b0(self):
        a = self.a
        a("v_mov_b32 v%d, %d\nv_mov_b32 v%d, 0\nv_mov_b32 v%d, 0\nv_mov_b32 v%d, 0\nv_mov_b32 v%d, 0" % (vT + 8, L_CNT, vT + 10, vT + 11, vT + 12, vT + 13))
        a("s_mov_b64 exec, 1")
        a("ds_write_b128 v%d, v[%d:%d]" % (vT + 8, vT + 10, vT + 13))
        a("ds_write_b128 v%d, v[%d:%d] offset:16" % (vT + 8, vT + 10, vT + 13))
        self.exec_all()
        a("s_waitcnt lgkmcnt(0)")
        a("s_barrier")

    def worker(self, normal):
        a = self.a; o = self.o; t = vT
        self.ops = []
        a("s_sub_u32 s%d, s%d, 4" % (sWW, sW))
        PQ = vVD; PD = vVD + 48; WD = vVD + 88; DF = vVD + 84
        NE = o.get("ne", 12) if normal else o.get("ne_l", 8)
        hK = []
        nt = self.nt
        def gl(reg, va, sb, off=0): return self.vm("global_load_dwordx4 v[%d:%d], v%d, s[%d:%d] offset:%d %s" % (reg, reg + 3, va, sb, sb + 1, off, nt))
        if normal:
            a("s_mul_i32 s%d, s%d, 205" % (sCT, sN)); a("s_lshr_b32 s%d, s%d, 10" % (sCT, sCT))
            a("s_mul_i32 s%d, s%d, 5" % (sRB5, sCT)); a("s_sub_u32 s%d, s%d, s%d" % (sRB5, sN, sRB5))
            a("s_cmp_lt_u32 s%d, 40" % sCT)
            a("s_cselect_b32 s%d, s%d, s%d" % (sPB, sWG, sWU)); a("s_cselect_b32 s%d, s%d, s%d" % (sPB + 1, sWG + 1, sWU + 1))
            a("s_cselect_b32 s%d, 32, 40" % sT1)
            a("s_cmp_lt_u32 s%d, 32" % sCT)
            a("s_cselect_b32 s%d, s%d, s%d" % (sPB, sWQ, sPB)); a("s_cselect_b32 s%d, s%d, s%d" % (sPB + 1, sWQ + 1, sPB + 1))
            a("s_cselect_b32 s%d, 0, s%d" % (sT1, sT1))
            a("s_cselect_b32 s%d, 2, 0" % sSTR); a("s_lshl_b32 s%d, 3072, s%d" % (sSTR, sSTR))
            a("s_sub_u32 s%d, s%d, s%d" % (sT1, sCT, sT1)); a("s_mul_i32 s%d, s%d, 384" % (sT1, sT1))
            a("s_lshl_b32 s%d, s%d, 2" % (sT0, sRB5)); a("s_add_u32 s%d, s%d, s%d" % (sT0, sT0, sWW))
            a("s_lshl_b32 s%d, s%d, 5" % (sT0, sT0))
            a("s_mul_i32 s%d, s%d, s%d" % (sT2, sT0, sSTR)); a("s_add_u32 s%d, s%d, s%d" % (sT1, sT1, sT2))
            a("s_add_u32 s%d, s%d, s%d" % (sPB, sPB, sT1)); a("s_addc_u32 s%d, s%d, 0" % (sPB + 1, sPB + 1))
            a("v_mul_u32_u24 v%d, s%d, v%d" % (vX + 8, sSTR, vL8))
            a("v_lshl_add_u32 v%d, v%d, 4, v%d" % (vX + 8, vL7, vX + 8))
            a("s_lshl_b32 s%d, s%d, 3" % (sSTR, sSTR))
            a("v_lshlrev_b32 v%d, 2, v%d" % (t, vL))
            for k in range(5): hx = self.vm("global_load_dword v%d, v%d, s[%d:%d] offset:%d" % (vX + k, t, sX, sX + 1, 256 * k))
            a("v_add_u32 v%d, s%d, v%d" % (t + 1, sT0, vL8)); a("v_lshlrev_b32 v%d, 1, v%d" % (t + 1, t + 1))
            for g in range(4):
                hx = self.vm("global_load_ushort v%d, v%d, s[%d:%d] offset:%d" % (vQF + g, t + 1, sX, sX + 1, 16 * g))
            hlast = None
            for g in range(4):
                if g: a("v_add_u32 v%d, s%d, v%d" % (vX + 8, sSTR, vX + 8))
                for tt in range(3): hlast = gl(PQ + 12 * g + 4 * tt, vX + 8, sPB, 128 * tt)
                if g == 0:
                    self.b0()
                    self.epoch_load()
            a("s_lshl_b32 s%d, s%d, 2" % (sT1, sCG)); a("s_add_u32 s%d, s%d, s%d" % (sT1, sT1, sWW))
            a("s_mul_i32 s%d, s%d, %d" % (sT2, sT1, 16 * 1280)); a("s_lshl_b32 s%d, s%d, 7" % (sT3, sRB))
            a("s_add_u32 s%d, s%d, s%d" % (sT2, sT2, sT3))
            a("s_add_u32 s%d, s%d, s%d" % (sWD, sWD, sT2)); a("s_addc_u32 s%d, s%d, 0" % (sWD + 1, sWD + 1))
            self.stamp(1)
            if o.get("so", 0):
                a("v_mul_u32_u24 v%d, 1280, v%d" % (vX + 10, vL8))
                a("v_lshl_add_u32 v%d, v%d, 4, v%d" % (vX + 10, vL7, vX + 10))
                gl(WD, vX + 10, sWD)
                a("v_add_u32 v%d, %d, v%d" % (vX + 10, 8 * 1280, vX + 10))
                gl(WD + 4, vX + 10, sWD)
                self.wo_base()
                if o.get("so", 0) == 2:
                    a("s_waitcnt vmcnt(0)")
                    for _ in range(7): a("s_sleep 16")
                a("s_setprio %d" % o.get("prio_w", 1))
                for i in range(24): self.kv_load("K", i)
                for i in range(24): self.kv_load("V", i)
                self.stamp(8)
                self.wo_loads()
                a("s_waitcnt vmcnt(0)")
                self.stamp(9)
                return
            self.consts()
            A = [vSC, vSC + 4, vQF + 4, vQF + 8]
            self.layernorm(hx, [(vQF + g, vKD + 80 + g) for g in range(4)])
            for g in range(4): self.build_A(A[g], vKD + 80 + g)
            self.stamp(2)
            self.phaseq(hlast, A, PQ, PD)
            a("v_mul_u32_u24 v%d, 1280, v%d" % (vX + 10, vL8))
            a("v_lshl_add_u32 v%d, v%d, 4, v%d" % (vX + 10, vL7, vX + 10))
            gl(WD, vX + 10, sWD)
            a("v_add_u32 v%d, %d, v%d" % (vX + 10, 8 * 1280, vX + 10))
            gl(WD + 4, vX + 10, sWD)
            self.wo_base()
            hK += [self.kv_load("K", i) for i in range(NE)]
        else:
            hK += [self.kv_load("K", i) for i in range(2)]
            self.b0()
            self.epoch_load()
            hK += [self.kv_load("K", i) for i in range(2, NE)]
            self.stamp(1)
            if o.get("so", 0):
                for i in range(NE, 24): self.kv_load("K", i)
                for i in range(24): self.kv_load("V", i)
                a("s_waitcnt vmcnt(0)")
                self.stamp(9)
                return
            self.consts()
            self.lgkm0()
            self.epoch_finish()
        self.q_addrs(normal)
        for _ in range(o.get("qdelay", 0)): a("s_sleep 16")
        self.q_loads(normal)
        a("s_waitcnt vmcnt(0)")
        self.poll_retry("q", lambda: self.q_check(normal), lambda: self.q_loads(normal), sleep=o.get("qsleep", 2))
        self.stamp(6)
        self.ops = []
        self.q_reduce(normal, WD, DF)
        a("s_setprio %d" % o.get("prio_w", 1))
        KQ = o.get("kq", 10)
        self.dstamp(2)
        hK = [-1] * NE + [self.kv_load("K", i) for i in range(NE, 24)]
        self.dstamp(11)
        hV = [self.kv_load("V", i) for i in range(KQ)]
        self.dstamp(12)
        def W(h):
            if h >= 0: self.wait(h)
        if normal:
            lab = a.newlabel("Lskip_f")
            a("s_cmp_eq_u32 s%d, 4" % sW); a("s_cbranch_scc0 %s" % lab)
            self.f_publish()
            a.label(lab)
        self.await_cnt(1, 4)
        self.read_qf()
        W(hK[11]); self.dstamp(13); self.qk_groups([0, 1, 2, 3])
        hV += [self.kv_load("V", i) for i in range(KQ, KQ + 2)]
        W(hK[23]); self.dstamp(14); self.qk_groups([4, 5, 6, 7])
        hV += [self.kv_load("V", i) for i in range(KQ + 2, KQ + 4)]
        self.softmax()
        self.stamp(8)
        hV += [self.kv_load("V", i) for i in range(KQ + 4, 24)]
        self.dstamp(3)
        if normal and o.get("wo_mode", 1) in (1, 2, 3):
            if o.get("wo_mode", 1) != 3: self.arrive(4)
            if o.get("wo_mode", 1) in (1, 3): self.wo_loads()
        if normal and o.get("early", 0): self.hop1_first(True)
        self.dstamp(4)
        self.wg_factor()
        for g in range(8): a("v_mul_f32 v%d, v%d, v%d" % (vSC + g, vFAC, vSC + g))
        self.build_PA()
        for g in range(8):
            self.wait(hV[3 * g + 2]); self.pv_group(g)
        self.stamp(9)
        self.pv_stage(scale=False)

    def run_path(self, normal):
        a = self.a
        tag = "n" if normal else "l"
        a("s_cmp_ge_u32 s%d, 4" % sW)
        a("s_cbranch_scc1 L_worker_%s" % tag)
        self.streamer(normal)
        a("s_branch L_tail_%s" % tag)
        a.label("L_worker_%s" % tag)
        self.worker(normal)
        a.label("L_tail_%s" % tag)
        if self.o.get("so", 0):
            a("s_barrier")
            self.stamp(10)
            a("s_waitcnt lgkmcnt(0)")
            a("s_getreg_b32 s%d, hwreg(HW_REG_XCC_ID)" % sT0)
            a("s_and_b32 s%d, s%d, 15" % (sT0, sT0))
            a("s_add_u32 s%d, s%d, 1" % (sT0, sT0))
            a("s_mul_i32 s%d, s%d, 100" % (sT0, sT0))
            a("s_add_u32 s%d, s%d, s%d" % (sSTAMP + 28, sSTAMP, sT0)); a("s_addc_u32 s%d, s%d, 0" % (sSTAMP + 29, sSTAMP + 1))
            self.write_stamps()
            return
        self.tail_publish_o()
        self.xstamp(1)
        wm = self.o.get("wo_mode", 1)
        if normal and wm == 0: self.wo_loads()
        if normal and wm in (2, 3):
            lab = a.newlabel("Lwo2")
            a("s_cmp_ge_u32 s%d, 4" % sW); a("s_cbranch_scc%d %s" % (0 if wm == 2 else 1, lab))
            self.wo_loads()
            a.label(lab)
        self.xstamp(2)
        if normal: self.hop1_wo()
        else:
            self.final()
            if self.o.get("probe", 0): self.probe()
        self.write_stamps()

    def generate(self):
        a = self.a
        self.prologue()
        if self.stamps:
            for k in range(1, 16): a("s_mov_b64 s[%d:%d], 0" % (sSTAMP + 2 * k, sSTAMP + 2 * k + 1))
        a("s_cmp_ge_u32 s%d, 240" % sN)
        a("s_cbranch_scc1 L_light")
        self.run_path(True)
        a("s_endpgm")
        a.label("L_light")
        self.run_path(False)
        a.label("L_end")
        body = a.text()
        lf = self.o.get("ldflag", 0); sf = self.o.get("stflag", 0)
        names = {0: "sc1", 1: "sc0 sc1", 2: "sc1 nt", 3: "sc0 sc1 nt"}
        out = []
        for line in body.split("\n"):
            if line.rstrip().endswith(" sc1") and "global_load" in line: line = line.rstrip()[:-3] + names[lf]
            elif line.rstrip().endswith(" sc1") and "global_store" in line: line = line.rstrip()[:-3] + names[sf]
            out.append(line)
        txt = wrap("\n".join(out), 256, 512, LDS_BYTES, vgpr=256, sgpr=100)
        return txt.replace("    s_endpgm\n.section", "    s_endpgm\nL_codeend:\n.section")

if __name__ == "__main__":
    import argparse
    ap = argparse.ArgumentParser()
    ap.add_argument("-o", default="k.s"); ap.add_argument("--D", type=int, default=3)
    ap.add_argument("--stamps", action="store_true"); ap.add_argument("--nt", default="nt")
    ap.add_argument("--mapping", default="lin"); ap.add_argument("--normp", action="store_true")
    ap.add_argument("--opt", action="append", default=[])
    args = ap.parse_args()
    opts = {}
    for kv in args.opt:
        k, v = kv.split("="); opts[k] = int(v)
    open(args.o, "w").write(Gen(args.D, args.stamps, args.nt, args.mapping, args.normp, opts).generate())
```
